```python
import torch

def _softmax(x, axis=-1):
    return torch.softmax(x, dim=axis)

def _gelu(x):
    return torch.nn.functional.gelu(x, approximate='tanh')

def _silu(x):
    return torch.nn.functional.silu(x)

def _sigmoid(x):
    return torch.sigmoid(x)

def _layernorm(x, axis=-1, eps=1e-05):
    m = x.mean(dim=axis, keepdim=True)
    v = x.var(dim=axis, keepdim=True, unbiased=False)
    return (x - m) / torch.sqrt(v + eps)

def _scatter_add(tgt, idx, src, axis=0):
    return tgt.clone().index_add_(axis, idx, src)

def _segment_sum(src, seg, n):
    out = torch.zeros((n,) + src.shape[1:], dtype=src.dtype)
    return out.index_add_(0, seg, src)

def _pad(x, pw):
    flat = tuple((v for pair in reversed(pw) for v in pair))
    return torch.nn.functional.pad(x, flat)
kernel_name = 'adaLN_cond__ssm_conv_s4__mixer_channel_mlp__prompt'

def setup_inputs():

    _w = lambda a: (lambda t: t.to(torch.bfloat16) if t.is_floating_point() else t)(torch.as_tensor(a))

    def _A_setup():
        B, L, D, N = (1, 2048, 576, 128)
        A_re = -(lambda _x: torch.exp(torch.as_tensor(_x)))((lambda *s: torch.randn(*s, dtype=torch.bfloat16) * 3.2)(D, N))
        A_im = torch.pi * (lambda *s: torch.randn(*s, dtype=torch.bfloat16) * 0.05)(D, N)
        B_re = (lambda *s: torch.randn(*s, dtype=torch.bfloat16) * 0.1)(D, N)
        B_im = (lambda *s: torch.randn(*s, dtype=torch.bfloat16) * 0.1)(D, N)
        C_re = (lambda *s: torch.randn(*s, dtype=torch.bfloat16) * 0.1)(D, N)
        C_im = (lambda *s: torch.randn(*s, dtype=torch.bfloat16) * 0.1)(D, N)
        log_dt = (lambda *s: torch.randn(*s, dtype=torch.bfloat16) * 0.05)(D) * 0.5 - 4.0
        Dskip = (lambda *s: torch.randn(*s, dtype=torch.bfloat16) * 0.05)(D)
        return {'u': _w((lambda *s: torch.randn(*s, dtype=torch.bfloat16) * 0.05)(B, L, D)), 'A_re': _w(A_re), 'A_im': _w(A_im), 'B_re': _w(B_re), 'B_im': _w(B_im), 'C_re': _w(C_re), 'C_im': _w(C_im), 'log_dt': _w(log_dt), 'Dskip': _w(Dskip)}
    _A_in = _A_setup()

    def _B_setup():
        B, S, D, F = (1, 2048, 576, 4608)
        return {'x': _w((lambda *s: torch.randn(*s, dtype=torch.bfloat16) * 0.05)(B, S, D)), 'w1': _w((lambda *s: torch.randn(*s, dtype=torch.bfloat16) * 3.2)(D, F) * D ** (-0.5)), 'b1': _w((lambda *s: torch.randn(*s, dtype=torch.bfloat16) * 1.6)(F)), 'w2': _w((lambda *s: torch.randn(*s, dtype=torch.bfloat16) * 0.8)(F, D) * F ** (-0.5)), 'b2': _w((lambda *s: torch.randn(*s, dtype=torch.bfloat16) * 0.8)(D))}
    _B_in = _B_setup()
    return {'A_u': _A_in['u'], 'A_A_re': _A_in['A_re'], 'A_A_im': _A_in['A_im'], 'A_B_re': _A_in['B_re'], 'A_B_im': _A_in['B_im'], 'A_C_re': _A_in['C_re'], 'A_C_im': _A_in['C_im'], 'A_log_dt': _A_in['log_dt'], 'A_Dskip': _A_in['Dskip'], 'B_x': _B_in['x'], 'B_w1': _B_in['w1'], 'B_b1': _B_in['b1'], 'B_w2': _B_in['w2'], 'B_b2': _B_in['b2'], 'c': _w((lambda *s: torch.randn(*s, dtype=torch.bfloat16) * 0.2)(1, 576) * 8.0), 'w_mod': _w((lambda *s: torch.randn(*s, dtype=torch.bfloat16) * 0.2)(576, 6 * 576) * 576 ** (-0.5) * 8.0)}

def reference(A_u, A_A_re, A_A_im, A_B_re, A_B_im, A_C_re, A_C_im, A_log_dt, A_Dskip, B_x, B_w1, B_b1, B_w2, B_b2, c, w_mod):

    def _A_ref(u, A_re, A_im, B_re, B_im, C_re, C_im, log_dt, Dskip):
        Bsz, L, D = u.shape
        dt = torch.exp(log_dt)[:, None]
        A = A_re + 1j * A_im
        Bc = B_re + 1j * B_im
        Cc = C_re + 1j * C_im
        logdA = dt * A
        dB = dt * Bc
        l = (lambda x, dt: x.to(dt))(torch.arange(L), A_re.dtype)
        P = torch.exp(logdA[:, :, None] * l[None, None, :])
        K = torch.einsum('dn,dnl,dn->dl', Cc, P, dB).real
        L2 = 2 * L
        Kp = _pad(K, ((0, 0), (0, L)))
        up = (lambda x, *d: x.permute(*d))(u, 0, 2, 1)
        up = _pad(up, ((0, 0), (0, 0), (0, L)))
        Kf = (lambda x, axes=(-2, -1): torch.fft.rfft2(x.float(), dim=axes))(Kp[:, None, :], axes=(-2, -1))
        Uf = (lambda x, axes=(-2, -1): torch.fft.rfft2(x.float(), dim=axes))(up[:, :, None, :], axes=(-2, -1))
        Yf = Uf * Kf[None, :, :, :]
        y = (lambda x, s, axes=(-2, -1): torch.fft.irfft2(x, s=s, dim=axes).to(torch.bfloat16))(Yf, (1, L2), axes=(-2, -1))[:, :, 0, :L]
        y = (lambda x, *d: x.permute(*d))(y, 0, 2, 1) + u * Dskip[None, None, :]
        return y

    def _B_ref(x, w1, b1, w2, b2):
        y = _layernorm(x, axis=-1)
        h = _gelu(torch.einsum('bsd,df->bsf', y, w1) + b1)
        return torch.einsum('bsf,fd->bsd', h, w2) + b2
    x = A_u
    mod = (_silu(c) @ w_mod).reshape(c.shape[0], 6, 1, -1)
    sa, ca, ga, sb, cb, gb = (mod[:, 0].clone(), mod[:, 1].clone(), mod[:, 2].clone(), mod[:, 3].clone(), mod[:, 4].clone(), mod[:, 5].clone())
    h = _layernorm(x, axis=-1) * (1 + ca) + sa
    x = x + ga * _A_ref(h, A_A_re, A_A_im, A_B_re, A_B_im, A_C_re, A_C_im, A_log_dt, A_Dskip)
    h = _layernorm(x, axis=-1) * (1 + cb) + sb
    x = x + gb * _B_ref(h, B_w1, B_b1, B_w2, B_b2)
    return x
```

```python
import re

TRANS = ("v_exp_f32", "v_log_f32", "v_rcp_f32", "v_rsq_f32", "v_sqrt_f32", "v_sin_f32", "v_cos_f32", "v_rcp_iflag_f32")
_REG = re.compile(r"^(-?)(\|?)(?:abs\()?([vsa])(?:(\d+)|\[(\d+):(\d+)\])\)?\|?$")

def vr(b, n=1):
    return f"v{b}" if n == 1 else f"v[{b}:{b+n-1}]"
def ar(b, n=1):
    return f"a{b}" if n == 1 else f"a[{b}:{b+n-1}]"
def sr(b, n=1):
    return f"s{b}" if n == 1 else f"s[{b}:{b+n-1}]"

def _regs(tok):
    tok = tok.strip()
    if tok in ("vcc",): return {("s", "vcc")}
    if tok in ("vcc_lo", "vcc_hi"): return {("s", "vcc")}
    if tok == "exec": return {("s", "exec")}
    if tok == "m0": return {("s", "m0")}
    m = _REG.match(tok)
    if not m: return set()
    f = m.group(3)
    if m.group(4) is not None: lo = hi = int(m.group(4))
    else: lo, hi = int(m.group(5)), int(m.group(6))
    return {(f, i) for i in range(lo, hi + 1)}

def _split_ops(rest):
    ops, cur, depth = [], "", 0
    for ch in rest:
        if ch in "[(": depth += 1
        if ch in "])": depth -= 1
        if ch == "," and depth == 0:
            ops.append(cur.strip()); cur = ""
        else: cur += ch
    if cur.strip(): ops.append(cur.strip())
    out, mods = [], []
    for o in ops:
        parts = o.split()
        out.append(parts[0]); mods += parts[1:]
    return out, mods

class Ins:
    __slots__ = ("text", "mn", "ops", "mods", "wr", "rd", "kind", "passes", "srcc", "srcab", "nop")
    def __init__(self, text):
        self.text = text
        t = text.split(";")[0].strip()
        p = t.split(None, 1)
        self.mn = p[0]
        self.ops, self.mods = _split_ops(p[1]) if len(p) > 1 else ([], [])
        mn, ops = self.mn, self.ops
        self.wr, self.rd = set(), set()
        self.passes = 0; self.srcc = set(); self.srcab = set(); self.nop = 1
        R = [_regs(o) for o in ops]
        allr = lambda L: set().union(*L) if L else set()
        if mn == "s_nop":
            self.kind = "nop"; self.nop = int(ops[0], 0) + 1
        elif mn.startswith("v_mfma"):
            self.kind = "mfma"
            self.passes = 8 if "32x32" in mn else 4
            self.wr = R[0]; self.srcab = R[1] | R[2]; self.srcc = R[3]; self.rd = self.srcab | self.srcc
        elif mn.startswith("v_"):
            self.kind = "trans" if mn.replace("_e32", "").replace("_e64", "") in TRANS else "valu"
            if mn.startswith("v_cmp"):
                self.wr = R[0]; self.rd = allr(R[1:])
            elif "permlane" in mn and "swap" in mn:
                self.wr = R[0] | R[1]; self.rd = R[0] | R[1]
            elif mn.startswith(("v_add_co", "v_sub_co", "v_addc_co", "v_subb_co", "v_mad_u64")):
                self.wr = R[0] | R[1]; self.rd = allr(R[2:])
            else:
                self.wr = R[0]; self.rd = allr(R[1:])
                if mn.startswith(("v_fmac", "v_dot2c", "v_pk_fmac")) or "_dpp" in mn or any(m.startswith(("quad_perm", "row_")) for m in self.mods):
                    self.rd |= R[0]
                if mn.startswith("v_cndmask") and len(ops) == 3: self.rd |= {("s", "vcc")}
        elif mn.startswith("ds_"):
            self.kind = "ds"
            if mn.startswith(("ds_read", "ds_bpermute", "ds_permute", "ds_swizzle")) or "_rtn" in mn:
                self.wr = R[0]; self.rd = allr(R[1:])
            else: self.rd = allr(R)
        elif mn.startswith(("buffer_", "global_")):
            self.kind = "vmem"
            lds = "lds" in self.mods or "_lds_" in mn
            if lds: self.rd = allr(R) | {("s", "m0")}
            elif "_load" in mn: self.wr = R[0]; self.rd = allr(R[1:])
            elif "atomic" in mn and "sc0" in self.mods:
                self.wr = R[0]; self.rd = allr(R)
            else: self.rd = allr(R)
        elif mn.startswith("s_"):
            self.kind = "salu"
            if mn.startswith(("s_cmp", "s_cbranch", "s_branch", "s_waitcnt", "s_barrier", "s_endpgm", "s_setprio", "s_sleep", "s_bitcmp")):
                self.rd = allr(R)
            else:
                self.wr = R[0] if R else set(); self.rd = allr(R[1:])
                if "saveexec" in mn: self.wr |= {("s", "exec")}
        else:
            raise ValueError("unknown instruction: " + text)
    def is_dpp(self):
        return "_dpp" in self.mn or any(m.startswith(("quad_perm", "row_")) for m in self.mods)
    def wide_store_data(self):
        if self.kind == "vmem" and "store" in self.mn and self.mn.endswith(("x3", "x4")):
            if self.mn.startswith("buffer_"): return _regs(self.ops[0])
            return _regs(self.ops[1])
        return set()

def need(p, c):
    n = 0
    pv = p.kind in ("valu", "trans")
    cv = c.kind in ("valu", "trans")
    vw = {r for r in p.wr if r[0] in "va"}
    sw = {r for r in p.wr if r[0] == "s"}
    if pv:
        if c.kind == "mfma" and vw & c.rd: n = max(n, 2)
        if cv and (vw & c.rd):
            if c.mn.startswith(("v_readfirstlane", "v_readlane")): n = max(n, 1)
            if c.is_dpp() or "permlane" in c.mn: n = max(n, 2)
            if p.kind == "trans" and c.kind != "trans": n = max(n, 1)
        if p.kind == "trans" and c.kind in ("vmem", "ds") and (vw & c.rd): n = max(n, 1)
        if sw & c.rd:
            if cv: n = max(n, 4 if c.mn.startswith(("v_readlane", "v_writelane")) else 2)
            if c.kind == "vmem": n = max(n, 5)
            if c.kind == "salu": n = max(n, 1)
    if p.kind == "mfma":
        big = 12 if p.passes == 8 else 8
        if c.kind == "mfma":
            if p.wr & c.srcab: n = max(n, big)
            if p.wr & c.srcc and not (p.wr == c.srcc and p.passes == c.passes): n = max(n, big - 2)
            if p.wr & c.wr and not (p.wr == c.wr and c.wr == c.srcc and p.passes == c.passes): n = max(n, big)
        elif c.kind in ("valu", "trans", "vmem", "ds"):
            if p.wr & (c.rd | c.wr): n = max(n, big)
            if cv and (p.srcc & c.wr): n = max(n, 7 if p.passes == 8 else 3)
            if c.kind in ("vmem", "ds") and (p.srcc & c.wr): n = max(n, 7 if p.passes == 8 else 3)
    if p.kind == "salu" and ("s", "m0") in p.wr and ("s", "m0") in c.rd and c.kind in ("vmem", "ds"): n = max(n, 1)
    ws = p.wide_store_data()
    if ws and (ws & c.wr): n = max(n, 2 if cv else 1)
    return n

class Kernel:
    def __init__(self, name):
        self.name = name; self.items = []
        self.nv = 1; self.ns = 3
        self.maxv = 0; self.maxs = 0; self.maxa = -1
        self.uid = 0
    def v(self, n=1, align=None):
        a = align or (2 if n > 1 else 1)
        self.nv = (self.nv + a - 1) // a * a
        b = self.nv; self.nv += n; return b
    def s(self, n=1, align=None):
        a = align or (4 if n >= 4 else 2 if n > 1 else 1)
        self.ns = (self.ns + a - 1) // a * a
        b = self.ns; self.ns += n
        assert self.ns <= 100, "out of sgprs"
        return b
    def __call__(self, text):
        for line in text.split("\n"):
            line = line.strip()
            if not line or line.startswith(";"): continue
            if line.endswith(":"): self.items.append(line)
            else: self.items.append(Ins(line))
    def label(self, base):
        self.uid += 1
        return f"L_{self.name}_{base}_{self.uid}"
    def finish(self, verbose=True):
        out = []; window = []; npad = 0
        padlog = []
        for it in self.items:
            if isinstance(it, str):
                out.append(it); continue
            req = 0
            for p, d in window:
                req = max(req, need(p, it) - d)
            if it.kind == "salu" and it.mn.startswith(("s_branch", "s_cbranch")):
                pass
            while req > 0:
                k = min(req, 16)
                nop = Ins(f"s_nop {k-1}")
                out.append(nop); npad += 1; padlog.append((k, it.text))
                for w in window: w[1] += k
                req -= k
            out.append(it)
            for w in window: w[1] += it.nop
            window = [w for w in window if w[1] < 24]
            window.append([it, 0])
            for r in it.wr | it.rd:
                if r[0] == "v": self.maxv = max(self.maxv, r[1])
                if r[0] == "a": self.maxa = max(self.maxa, r[1])
                if r[0] == "s" and isinstance(r[1], int): self.maxs = max(self.maxs, r[1])
        self.padlog = padlog
        if verbose: print(f"{self.name}: {sum(1 for o in out if not isinstance(o,str))} instrs, {npad} pads, maxv={self.maxv} maxa={self.maxa} maxs={self.maxs}")
        body = "\n".join(o if isinstance(o, str) else "    " + o.text for o in out)
        nfv = self.maxv + 1
        acc = (nfv + 3) // 4 * 4
        assert nfv <= 256 and self.maxa < 256
        if self.maxa >= 0: nfv = acc + self.maxa + 1
        txt = f""".text
.globl {self.name}
.p2align 8
.type {self.name},@function
{self.name}:
{body}
"""
        acc_off = min(acc, 256)
        desc = f""".section .rodata,"a"
.p2align 6
.amdhsa_kernel {self.name}
  .amdhsa_next_free_vgpr {nfv}
  .amdhsa_next_free_sgpr {max(self.maxs + 1, 16)}
  .amdhsa_accum_offset {acc_off}
  .amdhsa_group_segment_fixed_size 0
  .amdhsa_kernarg_size 152
  .amdhsa_user_sgpr_count 2
  .amdhsa_user_sgpr_kernarg_segment_ptr 1
  .amdhsa_system_sgpr_workgroup_id_x 1
.end_amdhsa_kernel
"""
        return txt, desc
```

```python
import sys, importlib
sys.path.insert(0, "gen")
from common import *
HDR = open("adaLN_cond__ssm_conv_s4__mixer_channel_mlp__prompt.s.ref").read().split("; Override launch geometry")[0]
def build(launches, path):
    txt = HDR
    for kk, g, b, lds in launches:
        txt += f"; @launch kernel={kk.name} grid=({g},1,1) block=({b},1,1) lds={lds}\n"
    txt += '.amdgcn_target "amdgcn-amd-amdhsa--gfx950"\n'
    done = {}
    for kk, *_ in launches:
        if kk.name not in done: done[kk.name] = kk.finish()
    for n, (t, d) in done.items(): txt += t
    for n, (t, d) in done.items(): txt += d
    open(path, "w").write(txt)
    print("wrote", path, len(txt), "bytes")
```

```python
from asmlib import *
KA = dict(u=0, A_re=8, A_im=16, B_re=24, B_im=32, C_re=40, C_im=48, log_dt=56, Dskip=64, w1=80, b1=88, w2=96, b2=104,
          c=112, wmod=120, out=128, dbg=136, ws=144)
L, D, F, N = 2048, 576, 4608, 128
def _al(x, a=4096): return (x + a - 1) // a * a
WS = {}
_off = 0
def _ws(name, size):
    global _off
    WS[name] = (_off, size); _off = _al(_off + size)
_ws("MOD", 3456 * 4)
_ws("XT", D * L * 2)
_ws("ZT", D * L * 2)
KP_ROW = 4224
_ws("KP", D * 2 * KP_ROW)
_ws("X1T", D * L * 2)
_ws("Y2F", D * L * 2)
_ws("X1F", D * L * 2)
_ws("W1P", D * F * 2)
_ws("W2P", D * F * 2)
_ws("HF", L * F * 2)
_ws("PART", 4 * L * D * 4)
_ws("FLAG", 65536)

def srd(k, dst, ptr, size, off=0):
    if off:
        k(f"s_add_u32 s{dst}, s{ptr}, {hex(off)}")
        k(f"s_addc_u32 s{dst+1}, s{ptr+1}, 0")
    else:
        k(f"s_mov_b32 s{dst}, s{ptr}")
        k(f"s_mov_b32 s{dst+1}, s{ptr+1}")
    k(f"s_mov_b32 s{dst+2}, {hex(size)}")
    k(f"s_mov_b32 s{dst+3}, 0x20000")
def srd_ws(k, dst, wsptr, name):
    srd(k, dst, wsptr, WS[name][1], WS[name][0])
def ldarg(k, dst, name):
    k(f"s_load_dwordx2 s[{dst}:{dst+1}], s[0:1], {KA[name]}")
import struct
def f2u(x): return hex(struct.unpack("<I", struct.pack("<f", x))[0])
LOG2E = 1.4426950408889634

_ws("STAMP", 8 << 20)
import os
STAMPS = os.environ.get("STAMPS", "0") == "1"
ST0 = 72
def stamp(k, i):
    if STAMPS:
        assert i < 12
        k(f"s_memrealtime s[{ST0+2*i}:{ST0+2*i+1}]")
def stamp_flush(k, sWS, kidx, n, vtmp, vtmp2):
    if not STAMPS: return
    k(f"s_memrealtime s[{ST0+2*n}:{ST0+2*n+1}]")
    k("s_mov_b64 exec, -1")
    k(f"v_lshrrev_b32 v{vtmp}, 6, v0")
    k(f"v_lshlrev_b32 v{vtmp}, 6, v{vtmp}")
    k(f"s_lshl_b32 s70, s2, 10")
    k(f"v_add_u32 v{vtmp}, s70, v{vtmp}")
    srd(k, 96, sWS, 1 << 20, WS["STAMP"][0] + (kidx << 20))
    k("s_mov_b64 exec, 1")
    k("s_waitcnt lgkmcnt(0)")
    for i in range(n + 1):
        k(f"v_mov_b32 v{vtmp2}, s{ST0+2*i}")
        k(f"buffer_store_dword v{vtmp2}, v{vtmp}, s[96:99], 0 offen offset:{4*i}")
```

```python
from common import *

K1_NG, K1_NL, K1_NK = 112, 64, 288
K1_GRID = K1_NG + K1_NL + K1_NK
KG_W = 14416
LN_RS = 1184
K1_LDS = 2 * 32 * LN_RS

def cmul(k, dr, di, xr, xi, wr, wi, t0, t1):
    k(f"v_mul_f32 v{t0}, v{xi}, v{wi}")
    k(f"v_mul_f32 v{t1}, v{xi}, v{wr}")
    k(f"v_fma_f32 v{di}, v{xr}, v{wi}, v{t1}") if di != xr else None
    k(f"v_fma_f32 v{dr}, v{xr}, v{wr}, -v{t0}")

def gen_k1():
    k = Kernel("k1_kernel")
    sWS = k.s(2)
    ns0 = k.ns
    k(f"""s_cmp_ge_u32 s2, {K1_GRID}
          s_cbranch_scc1 L_k1_end""")
    stamp(k, 0)
    ldarg(k, sWS, "ws")
    k(f"""s_cmp_lt_u32 s2, {K1_NG}
          s_cbranch_scc1 L_k1_gemv
          s_cmp_lt_u32 s2, {K1_NG + K1_NL}
          s_cbranch_scc1 L_k1_ln
          s_branch L_k1_kgen""")
    k("L_k1_gemv:")
    k.nv = 1; k.ns = ns0
    pW, pC = k.s(2), k.s(2)
    rW, rC, rM = k.s(4), k.s(4), k.s(4)
    sT, sU, sCol = k.s(), k.s(), k.s()
    sO = [k.s() for _ in range(9)]
    sX = k.s(2)
    ldarg(k, pW, "wmod"); ldarg(k, pC, "c")
    k(f"""s_and_b32 s{sT}, s2, 0xfffffff0
          s_and_b32 s{sU}, s2, 7
          s_lshl_b32 s{sU}, s{sU}, 1
          s_add_u32 s{sT}, s{sT}, s{sU}
          s_lshr_b32 s{sU}, s2, 3
          s_and_b32 s{sU}, s{sU}, 1
          s_add_u32 s{sT}, s{sT}, s{sU}
          s_cmp_ge_u32 s{sT}, 108
          s_cbranch_scc1 L_k1_end
          s_lshl_b32 s{sCol}, s{sT}, 6""")
    vrg, vq, vOff, vC, vA = k.v(), k.v(), k.v(), k.v(), k.v()
    vc = [k.v() for _ in range(9)]
    vt = [k.v() for _ in range(4)]
    acc = k.v(8, 4)
    vw = [k.v(4, 4) for _ in range(9)]
    k(f"""v_lshrrev_b32 v{vrg}, 2, v0
          v_and_b32 v{vq}, 3, v0
          v_mul_u32_u24 v{vOff}, 6912, v{vrg}
          v_lshl_add_u32 v{vOff}, v{vq}, 4, v{vOff}
          v_lshlrev_b32 v{vC}, 1, v{vrg}""")
    for i in range(9): k(f"s_add_u32 s{sO[i]}, s{sCol}, {i * 64 * 6912}")
    k("s_waitcnt lgkmcnt(0)")
    stamp(k, 1)
    srd(k, rW, pW, 576 * 6912); srd(k, rC, pC, 1152); srd_ws(k, rM, sWS, "MOD")
    for i in range(9): k(f"buffer_load_ushort v{vc[i]}, v{vC}, {sr(rC,4)}, 0 offen offset:{128*i}")
    for i in range(9): k(f"buffer_load_dwordx4 {vr(vw[i],4)}, v{vOff}, {sr(rW,4)}, s{sO[i]} offen")
    k(f"""v_lshrrev_b32 v{vA}, 4, v0
          v_lshlrev_b32 v{vA}, 7, v{vA}
          v_lshl_add_u32 v{vA}, v{vq}, 5, v{vA}
          s_waitcnt vmcnt(9)""")
    stamp(k, 2)
    for i in range(9): k(f"v_lshlrev_b32 v{vc[i]}, 16, v{vc[i]}")
    ve = [k.v() for _ in range(9)]
    for i in range(9): k(f"v_mul_f32 v{ve[i]}, {f2u(-LOG2E)}, v{vc[i]}")
    for i in range(9): k(f"v_exp_f32 v{ve[i]}, v{ve[i]}")
    for i in range(9): k(f"v_add_f32 v{ve[i]}, 1.0, v{ve[i]}")
    for i in range(9): k(f"v_rcp_f32 v{ve[i]}, v{ve[i]}")
    for i in range(9): k(f"v_mul_f32 v{vc[i]}, v{vc[i]}, v{ve[i]}")
    for i in range(9): k(f"v_cvt_pk_bf16_f32 v{vc[i]}, v{vc[i]}, v{vc[i]}")
    for i in range(9): k(f"v_and_b32 v{vc[i]}, 0xffff0000, v{vc[i]}")
    for i in range(9):
        k(f"s_waitcnt vmcnt({8-i})")
        op = "v_mul_f32" if i == 0 else "v_fmac_f32"
        for j in range(4):
            a, b = vt[(2*j) % 4], vt[(2*j+1) % 4]
            k(f"v_lshlrev_b32 v{a}, 16, v{vw[i]+j}")
            k(f"v_and_b32 v{b}, 0xffff0000, v{vw[i]+j}")
            k(f"{op} v{acc+2*j}, v{vc[i]}, v{a}")
            k(f"{op} v{acc+2*j+1}, v{vc[i]}, v{b}")
    stamp(k, 3)
    for sh in (4, 8):
        for j in range(8): k(f"v_add_f32_dpp v{acc+j}, v{acc+j}, v{acc+j} row_ror:{sh} row_mask:0xf bank_mask:0xf")
    k(f"""ds_write_b128 v{vA}, {vr(acc,4)}
          ds_write_b128 v{vA}, {vr(acc+4,4)} offset:16
          s_waitcnt lgkmcnt(0)
          s_barrier
          v_cmp_gt_u32 vcc, 32, v0
          v_lshlrev_b32 v{vA}, 2, v0
          s_and_saveexec_b64 {sr(sX,2)}, vcc
          s_cbranch_execz L_k1_end""")
    pv = vw[0]
    for p in range(16): k(f"ds_read_b32 v{pv+p}, v{vA} offset:{128*p}")
    k("s_waitcnt lgkmcnt(0)")
    for st in (8, 4, 2, 1):
        for p in range(st): k(f"v_add_f32 v{pv+p}, v{pv+p}, v{pv+p+st}")
    k(f"""v_cvt_pk_bf16_f32 v{pv}, v{pv}, v{pv}
          s_lshl_b32 s{sCol}, s{sCol}, 1
          v_and_b32 v{pv}, 0xffff0000, v{pv}
          buffer_store_dword v{pv}, v{vA}, {sr(rM,4)}, s{sCol} offen""")
    stamp_flush(k, sWS, 0, 4, vrg, vq)
    k("s_endpgm")
    k("L_k1_ln:")
    k.nv = 1; k.ns = ns0
    pU = k.s(2); rU, rX, rZ = k.s(4), k.s(4), k.s(4)
    sR, sO1, sO2 = k.s(), k.s(), k.s()
    ldarg(k, pU, "u")
    k(f"""s_sub_u32 s{sR}, s2, {K1_NG}
          s_mul_i32 s{sO1}, s{sR}, {32*1152}
          s_lshl_b32 s{sO2}, s{sR}, 6""")
    vrow, vj, vOff, vL, vS, vM, vT, vRd, vSt = [k.v() for _ in range(9)]
    raw = k.v(36, 4); xf = k.v(72, 4)
    k(f"""v_lshrrev_b32 v{vrow}, 3, v0
          v_and_b32 v{vj}, 7, v0
          v_mul_u32_u24 v{vOff}, 1152, v{vrow}
          v_lshl_add_u32 v{vOff}, v{vj}, 4, v{vOff}
          v_mul_u32_u24 v{vL}, {LN_RS}, v{vrow}
          v_lshl_add_u32 v{vL}, v{vj}, 4, v{vL}
          s_waitcnt lgkmcnt(0)""")
    stamp(k, 1)
    srd(k, rU, pU, L * D * 2); srd_ws(k, rX, sWS, "XT"); srd_ws(k, rZ, sWS, "ZT")
    for i in range(9): k(f"buffer_load_dwordx4 {vr(raw+4*i,4)}, v{vOff}, {sr(rU,4)}, s{sO1} offen offset:{128*i}")
    k(f"""v_bfe_u32 v{vT}, v0, 4, 2
          v_lshlrev_b32 v{vT}, 3, v{vT}
          v_bfe_u32 v{vRd}, v0, 2, 2
          v_add_u32 v{vRd}, v{vRd}, v{vT}
          v_mul_u32_u24 v{vRd}, {LN_RS}, v{vRd}
          v_and_b32 v{vT}, 3, v0
          v_lshl_add_u32 v{vRd}, v{vT}, 3, v{vRd}
          v_lshrrev_b32 v{vT}, 6, v0
          v_lshl_add_u32 v{vRd}, v{vT}, 5, v{vRd}
          v_lshlrev_b32 v{vSt}, 4, v{vT}
          v_and_b32 v{vT}, 15, v0
          v_add_u32 v{vSt}, v{vSt}, v{vT}
          v_lshlrev_b32 v{vSt}, 12, v{vSt}
          v_bfe_u32 v{vT}, v0, 4, 2
          v_lshl_add_u32 v{vSt}, v{vT}, 4, v{vSt}""")
    for i in range(9):
        k(f"s_waitcnt vmcnt({8-i})")
        if i == 0: stamp(k, 2)
        if i == 8: stamp(k, 3)
        k(f"ds_write_b128 v{vL}, {vr(raw+4*i,4)} offset:{128*i}")
        for j in range(4):
            k(f"v_lshlrev_b32 v{xf+8*i+2*j}, 16, v{raw+4*i+j}")
            k(f"v_and_b32 v{xf+8*i+2*j+1}, 0xffff0000, v{raw+4*i+j}")
        for j in range(8):
            if i == 0 and j == 0: continue
            if i == 0 and j == 1: k(f"v_add_f32 v{vS}, v{xf}, v{xf+1}")
            else: k(f"v_add_f32 v{vS}, v{vS}, v{xf+8*i+j}")
    def red8(v):
        for p in ("quad_perm:[1,0,3,2]", "quad_perm:[2,3,0,1]", "row_half_mirror"):
            k(f"v_add_f32_dpp v{v}, v{v}, v{v} {p} row_mask:0xf bank_mask:0xf")
    red8(vS)
    k(f"v_mul_f32 v{vM}, {f2u(1.0/576)}, v{vS}")
    for e in range(72): k(f"v_sub_f32 v{xf+e}, v{xf+e}, v{vM}")
    k(f"v_mul_f32 v{vS}, v{xf}, v{xf}")
    k(f"v_mul_f32 v{vT}, v{xf+1}, v{xf+1}")
    for e in range(2, 72): k(f"v_fmac_f32 v{vS if e % 2 == 0 else vT}, v{xf+e}, v{xf+e}")
    k(f"v_add_f32 v{vS}, v{vS}, v{vT}")
    red8(vS)
    k(f"""v_mov_b32 v{vT}, {f2u(1e-5)}
          v_fmac_f32 v{vT}, {f2u(1.0/576)}, v{vS}
          v_rsq_f32 v{vT}, v{vT}""")
    for e in range(72): k(f"v_mul_f32 v{xf+e}, v{xf+e}, v{vT}")
    zp = k.v(36, 4)
    for e in range(36): k(f"v_cvt_pk_bf16_f32 v{zp+e}, v{xf+2*e}, v{xf+2*e+1}")
    for i in range(9): k(f"ds_write_b128 v{vL}, {vr(zp+4*i,4)} offset:{32*LN_RS + 128*i}")
    k("s_waitcnt lgkmcnt(0)\ns_barrier")
    stamp(k, 4)
    o = xf
    for tile, rr in ((0, rX), (1, rZ)):
        for i in range(9):
            q = o + 4 * (tile * 9 + i)
            k(f"ds_read_b64_tr_b16 {vr(q,2)}, v{vRd} offset:{tile*32*LN_RS + 128*i}")
            k(f"ds_read_b64_tr_b16 {vr(q+2,2)}, v{vRd} offset:{tile*32*LN_RS + 128*i + 4*LN_RS}")
    sQ = [k.s() for _ in range(9)]
    for i in range(9): k(f"s_add_u32 s{sQ[i]}, s{sO2}, {i * 64 * 4096}")
    k("s_waitcnt lgkmcnt(0)")
    for tile, rr in ((0, rX), (1, rZ)):
        for i in range(9):
            q = o + 4 * (tile * 9 + i)
            k(f"buffer_store_dwordx4 {vr(q,4)}, v{vSt}, {sr(rr,4)}, s{sQ[i]} offen")
    stamp_flush(k, sWS, 0, 5, vrow, vj)
    k("s_endpgm")
    k("L_k1_kgen:")
    k.nv = 1; k.ns = ns0
    names = ["A_re", "A_im", "B_re", "B_im", "C_re", "C_im"]
    pP = [k.s(2) for _ in names]; pD = k.s(2)
    rP = [k.s(4) for _ in names]; rD = k.s(4); rK = k.s(4)
    sWv, sCh, sHalf, sPo, sDo, sBase, sTb, sOb, sKo = [k.s() for _ in range(9)]
    sX = k.s(2)
    for p, n in zip(pP, names): ldarg(k, p, n)
    ldarg(k, pD, "log_dt")
    vLane, vT0, vT1, vL2, vW = [k.v() for _ in range(5)]
    k(f"""v_lshrrev_b32 v{vT0}, 6, v0
          v_and_b32 v{vLane}, 63, v0
          v_readfirstlane_b32 s{sWv}, v{vT0}
          v_lshlrev_b32 v{vL2}, 1, v{vLane}
          s_sub_u32 s{sCh}, s2, {K1_NG + K1_NL}
          s_lshl_b32 s{sCh}, s{sCh}, 1
          s_lshr_b32 s{sPo}, s{sWv}, 1
          s_add_u32 s{sCh}, s{sCh}, s{sPo}
          s_and_b32 s{sHalf}, s{sWv}, 1
          s_lshl_b32 s{sPo}, s{sCh}, 8
          s_lshl_b32 s{sDo}, s{sHalf}, 7
          s_add_u32 s{sPo}, s{sPo}, s{sDo}
          s_lshl_b32 s{sDo}, s{sCh}, 1
          s_mul_i32 s{sBase}, s{sWv}, {KG_W}
          s_and_b32 s{sTb}, s{sWv}, 2
          s_mul_i32 s{sTb}, s{sTb}, {KG_W}
          s_add_u32 s{sOb}, s{sTb}, {KG_W}
          s_mul_i32 s{sKo}, s{sCh}, {2*KP_ROW}
          s_waitcnt lgkmcnt(0)""")
    stamp(k, 1)
    for p, r in zip(pP, rP): srd(k, r, p, D * N * 2)
    srd(k, rD, pD, D * 2); srd_ws(k, rK, sWS, "KP")
    prm = [k.v() for _ in names]; vDt = k.v()
    k(f"buffer_load_ushort v{vDt}, off, {sr(rD,4)}, s{sDo}")
    for v, r in zip(prm, rP): k(f"buffer_load_ushort v{v}, v{vL2}, {sr(r,4)}, s{sPo} offen")
    ga = [[k.v() for _ in range(9)] for _ in range(3)]
    v8c, vF0, vF1, vSm = k.v(), k.v(), k.v(), k.v()
    sFl, sSb = k.s(), k.s()
    k(f"""s_lshl_b32 s{sFl}, s{sHalf}, 6
          v_add_u32 v{v8c}, s{sFl}, v{vLane}
          v_lshlrev_b32 v{vW}, 4, v{v8c}
          v_lshlrev_b32 v{v8c}, 3, v{v8c}
          s_add_u32 s{sSb}, s{sTb}, 8
          s_sub_u32 s{sFl}, s{sSb}, {2*0x4280}""")
    for it in range(3):
        for j in range(9):
            k(f"v_add_u32 v{ga[it][j]}, {it*1024 + j - 15}, v{v8c}")
            if it == 2: k(f"v_min_i32 v{ga[it][j]}, 2047, v{ga[it][j]}")
        for j in range(0, 9, 2):
            j1 = min(j + 1, 8)
            k(f"v_cvt_f32_i32 v{vF0}, v{ga[it][j]}")
            k(f"v_cvt_f32_i32 v{vF1}, v{ga[it][j1]}")
            k(f"v_cvt_pk_bf16_f32 v{vF0}, v{vF0}, v{vF1}")
            k(f"v_lshrrev_b32 v{vF1}, 16, v{vF0}")
            k(f"v_and_b32 v{vF0}, 0xffff, v{vF0}")
            for jj, f in ((j, vF0), (j1, vF1)):
                if jj == j1 and j1 == j and f == vF1: continue
                if it == 0:
                    k(f"v_lshl_add_u32 v{f}, v{f}, 1, s{sFl}")
                    k(f"v_cmp_gt_i32 vcc, 128, v{ga[it][jj]}")
                    k(f"v_max_i32 v{vSm}, -1, v{ga[it][jj]}")
                    k(f"v_lshl_add_u32 v{vSm}, v{vSm}, 1, s{sSb}")
                    k(f"v_cndmask_b32 v{ga[it][jj]}, v{f}, v{vSm}, vcc")
                else:
                    k(f"v_lshl_add_u32 v{ga[it][jj]}, v{f}, 1, s{sFl}")
    vWr, vRdA = k.v(), k.v()
    k(f"""v_lshl_add_u32 v{vWr}, v{vLane}, 2, s{sBase}
          v_and_b32 v{vT0}, 31, v{vLane}
          v_mul_u32_u24 v{vRdA}, 272, v{vT0}
          v_lshrrev_b32 v{vT1}, 5, v{vLane}
          v_lshl_add_u32 v{vRdA}, v{vT1}, 4, v{vRdA}
          v_add_u32 v{vRdA}, s{sBase}, v{vRdA}""")
    stamp(k, 2)
    k("s_waitcnt vmcnt(0)")
    stamp(k, 3)
    Ar, Ai, Br, Bi, Cr, Ci = prm
    k(f"v_lshlrev_b32 v{vDt}, 16, v{vDt}")
    k(f"v_mul_f32 v{vDt}, {f2u(LOG2E)}, v{vDt}")
    k(f"v_exp_f32 v{vDt}, v{vDt}")
    for v in prm: k(f"v_lshlrev_b32 v{v}, 16, v{v}")
    k(f"v_cvt_pk_bf16_f32 v{vDt}, v{vDt}, v{vDt}")
    k(f"v_and_b32 v{vDt}, 0xffff0000, v{vDt}")
    for v in (Ar, Ai, Br, Bi): k(f"v_mul_f32 v{v}, v{vDt}, v{v}")
    k(f"v_mul_f32 v{Ar}, {f2u(LOG2E)}, v{Ar}")
    k(f"v_mul_f32 v{Ai}, 0.15915494, v{Ai}")
    t = [k.v() for _ in range(4)]
    Gr, Gi, Er, Ei, Hr, Hi = [k.v() for _ in range(6)]
    cmul(k, Gr, Gi, Cr, Ci, Br, Bi, t[0], t[1])
    W = {}
    for l_ in (1, 8, 256):
        W[l_] = (k.v(), k.v())
    mg = [k.v() for _ in range(3)]
    for idx, l_ in enumerate((1, 8, 256)):
        wr_, wi_ = W[l_]
        k(f"v_mul_f32 v{mg[idx]}, {f2u(float(l_))}, v{Ar}")
        k(f"v_mul_f32 v{wi_}, {f2u(float(l_))}, v{Ai}")
    for idx, l_ in enumerate((1, 8, 256)):
        wr_, wi_ = W[l_]
        k(f"v_exp_f32 v{mg[idx]}, v{mg[idx]}")
        k(f"v_fract_f32 v{wi_}, v{wi_}")
    for idx, l_ in enumerate((1, 8, 256)):
        wr_, wi_ = W[l_]
        k(f"v_cos_f32 v{wr_}, v{wi_}")
        k(f"v_sin_f32 v{wi_}, v{wi_}")
    for idx, l_ in enumerate((1, 8, 256)):
        wr_, wi_ = W[l_]
        k(f"v_mul_f32 v{wr_}, v{mg[idx]}, v{wr_}")
        k(f"v_mul_f32 v{wi_}, v{mg[idx]}, v{wi_}")
    W[2] = (k.v(), k.v()); W[4] = (k.v(), k.v())
    cmul(k, W[2][0], W[2][1], W[1][0], W[1][1], W[1][0], W[1][1], t[0], t[1])
    cmul(k, W[4][0], W[4][1], W[2][0], W[2][1], W[2][0], W[2][1], t[0], t[1])
    pk = [k.v() for _ in range(4)]
    pki = [0]
    def put(row, r_, i_, neg):
        p = pk[pki[0] % 4]; pki[0] += 1
        k(f"v_cvt_pk_bf16_f32 v{p}, v{r_}, {'-' if neg else ''}v{i_}")
        k(f"ds_write_b32 v{vWr}, v{p} offset:{row*272}")
    gops, eops = [], []
    G2r, G2i = k.v(), k.v()
    gops.append(lambda: cmul(k, Hr, Hi, Gr, Gi, *W[256], t[0], t[1]))
    gops.append(lambda: put(0, Gr, Gi, True))
    for a in range(1, 8):
        gops.append(lambda a=a: (cmul(k, Gr, Gi, Gr, Gi, *W[1], t[0], t[1]), put(a, Gr, Gi, True)))
    gops.append(lambda: put(8, Hr, Hi, True))
    gops.append(lambda: (cmul(k, G2r, G2i, Hr, Hi, *W[2], t[0], t[1]), put(9, G2r, G2i, True)))
    for a in (10, 11):
        gops.append(lambda a=a: (cmul(k, G2r, G2i, G2r, G2i, *W[2], t[0], t[1]), put(a, G2r, G2i, True)))
    for a in (12, 14):
        gops.append(lambda a=a: (cmul(k, Hr, Hi, Hr, Hi, *W[256], t[0], t[1]), put(a, Hr, Hi, True)))
        gops.append(lambda a=a: (cmul(k, G2r, G2i, Hr, Hi, *W[4], t[0], t[1]), put(a + 1, G2r, G2i, True)))
    for a in range(16, 21):
        gops.append(lambda a=a: (cmul(k, Hr, Hi, Hr, Hi, *W[256], t[0], t[1]), put(a, Hr, Hi, True)))
    eops.append(lambda: (k(f"v_mov_b32 v{pk[3]}, 0x3f80"), k(f"ds_write_b32 v{vWr}, v{pk[3]} offset:{21*272}")))
    eops.append(lambda: put(22, W[8][0], W[8][1], False))
    eops.append(lambda: (cmul(k, Er, Ei, *W[8], *W[8], t[2], t[3]), put(23, Er, Ei, False)))
    for b in range(3, 32):
        eops.append(lambda b=b: (cmul(k, Er, Ei, Er, Ei, *W[8], t[2], t[3]), put(21 + b, Er, Ei, False)))
    while gops or eops:
        if eops: eops.pop(0)()
        if gops: gops.pop(0)()
    k("s_waitcnt lgkmcnt(0)")
    stamp(k, 4)
    fa = k.v(32, 4); fb = k.v(32, 4); acc = k.v(16, 4)
    for tt in range(8):
        k(f"ds_read_b128 {vr(fa+4*tt,4)}, v{vRdA} offset:{32*tt}")
        k(f"ds_read_b128 {vr(fb+4*tt,4)}, v{vRdA} offset:{21*272 + 32*tt}")
    for tt in range(8):
        k(f"s_waitcnt lgkmcnt({14-2*tt})")
        c = "0" if tt == 0 else vr(acc, 16)
        k(f"v_mfma_f32_32x32x16_bf16 {vr(acc,16)}, {vr(fa+4*tt,4)}, {vr(fb+4*tt,4)}, {c}")
    vB, vHf, vA0, vA1, vA2, vA3, vP = [k.v() for _ in range(7)]
    k(f"""v_and_b32 v{vB}, 31, v{vLane}
          v_lshrrev_b32 v{vHf}, 5, v{vLane}
          v_lshlrev_b32 v{vA0}, 4, v{vB}
          v_lshl_add_u32 v{vA0}, v{vHf}, 3, v{vA0}
          v_add_u32 v{vA0}, s{sSb}, v{vA0}
          v_cmp_eq_u32 vcc, 0, v{vHf}
          v_lshlrev_b32 v{vT0}, 3, v{vB}
          v_lshlrev_b32 v{vT1}, 2, v{vB}
          v_add_u32 v{vA1}, 512, v{vT0}
          v_add_u32 v{vA2}, 768, v{vT1}
          v_cndmask_b32 v{vA1}, v{vA2}, v{vA1}, vcc
          v_add_u32 v{vT0}, 516, v{vT0}
          v_add_u32 v{vA2}, 896, v{vT1}
          v_cndmask_b32 v{vA2}, v{vA2}, v{vT0}, vcc
          v_add_u32 v{vA1}, s{sSb}, v{vA1}
          v_add_u32 v{vA2}, s{sSb}, v{vA2}
          v_lshlrev_b32 v{vA3}, 1, v{vB}
          v_lshl_add_u32 v{vA3}, v{vHf}, 8, v{vA3}
          v_add_u32 v{vA3}, s{sSb}, v{vA3}
          v_lshl_add_u32 v{vP}, v{vLane}, 4, s{sOb}
          s_cmp_eq_u32 s{sHalf}, 0
          s_cbranch_scc1 L_k1_kg_h0
          s_nop 7""")
    for q in range(3): k(f"ds_write_b128 v{vP}, {vr(acc+4*q,4)} offset:{1024*q}")
    k("""s_waitcnt lgkmcnt(0)
         s_barrier
         s_branch L_k1_kg_join
         L_k1_kg_h0:
         s_barrier""")
    for q in range(3): k(f"ds_read_b128 {vr(fa+4*q,4)}, v{vP} offset:{1024*q}")
    k(f"v_mov_b32 v{vT0}, 0")
    k(f"v_mov_b32 v{vT1}, s{sTb}")
    k(f"ds_write_b64 v{vT1}, v[{fb}:{fb+1}]") if False else None
    k("s_waitcnt lgkmcnt(0)")
    for r_ in range(12): k(f"v_add_f32 v{acc+r_}, v{acc+r_}, v{fa+r_}")
    for r_ in range(6): k(f"v_cvt_pk_bf16_f32 v{fb+r_}, v{acc+2*r_}, v{acc+2*r_+1}")
    k(f"""ds_write_b32 v{vT1}, v{vT0} offset:4
          ds_write_b64 v{vA0}, {vr(fb,2)}
          ds_write_b32 v{vA1}, v{fb+2}
          ds_write_b32 v{vA2}, v{fb+3}
          ds_write_b16 v{vA3}, v{fb+4} offset:1024
          ds_write_b16_d16_hi v{vA3}, v{fb+4} offset:1088
          ds_write_b16 v{vA3}, v{fb+5} offset:1152
          ds_write_b16_d16_hi v{vA3}, v{fb+5} offset:1216
          s_waitcnt lgkmcnt(0)
          L_k1_kg_join:
          s_barrier""")
    stamp(k, 5)
    ev = [[fa + 9 * it + j for j in range(9)] for it in range(3)]
    for it in range(3):
        for j in range(9): k(f"ds_read_u16 v{ev[it][j]}, v{ga[it][j]}")
    outq = k.v(24, 4)
    for it in range(3):
        k(f"s_waitcnt lgkmcnt({min(15, 18 - 9*it)})" if it < 2 else "s_waitcnt lgkmcnt(0)")
        if it == 0: k("s_waitcnt lgkmcnt(15)") if False else None
        e = ev[it]; o0 = outq + 8 * it
        for j in range(4):
            k(f"v_lshl_or_b32 v{o0+j}, v{e[2*j+1]}, 16, v{e[2*j]}")
            k(f"v_lshl_or_b32 v{o0+4+j}, v{e[2*j+2]}, 16, v{e[2*j+1]}")
        if it == 2:
            k(f"""v_cmp_gt_u32 vcc, 32, v{vW}
                  s_and_saveexec_b64 {sr(sX,2)}, vcc
                  s_cbranch_execz L_k1_kg_fin""")
        if it == 2:
            k(f"v_add_u32 v{vW}, 4096, v{vW}")
            off = 0
        else: off = 2048 * it
        k(f"buffer_store_dwordx4 {vr(o0,4)}, v{vW}, {sr(rK,4)}, s{sKo} offen offset:{off}")
        k(f"s_add_u32 s{sDo}, s{sKo}, {KP_ROW}") if it == 0 else None
        k(f"buffer_store_dwordx4 {vr(o0+4,4)}, v{vW}, {sr(rK,4)}, s{sDo} offen offset:{off}")
    k("L_k1_kg_fin:")
    stamp_flush(k, sWS, 0, 6, vT0, vT1)
    k("L_k1_end:\ns_endpgm")
    return k
```

```python
from common import *

K2_NC, K2_NW1, K2_NW2 = 192, 144, 144
K2_GRID = K2_NC + K2_NW1 + K2_NW2
KS = 4160
UOFF = 4 * KS
K2_W = 21248
K2_LDS = 3 * K2_W
WT = "sc0 sc1"

def gen_k2(wt=WT):
    k = Kernel("k2_kernel")
    sWS = k.s(2); sWv = k.s(); sBase = k.s()
    ns0 = k.ns
    vLane = k.v(); vT0 = k.v(); vT1 = k.v()
    nv0 = k.nv
    k(f"""s_cmp_ge_u32 s2, {K2_GRID}
          s_cbranch_scc1 L_k2_end""")
    stamp(k, 0)
    ldarg(k, sWS, "ws")
    k(f"""v_lshrrev_b32 v{vT0}, 6, v0
          v_and_b32 v{vLane}, 63, v0
          v_readfirstlane_b32 s{sWv}, v{vT0}
          s_mul_i32 s{sBase}, s{sWv}, {K2_W}
          s_cmp_ge_u32 s2, {K2_NC + K2_NW1}
          s_cbranch_scc1 L_k2_w2
          s_cmp_ge_u32 s2, {K2_NC}
          s_cbranch_scc1 L_k2_w1""")
    pD = k.s(2); sM = k.s(2)
    rK, rZ, rX, rO = k.s(4), k.s(4), k.s(4), k.s(4)
    sCh, sKo, sRo, sA, sB = [k.s() for _ in range(5)]
    sSa, sCa, sGa, sDk = [k.s() for _ in range(4)]
    sX = k.s(2)
    ldarg(k, pD, "Dskip")
    k(f"""s_mul_i32 s{sCh}, s2, 3
          s_add_u32 s{sCh}, s{sCh}, s{sWv}
          s_mul_i32 s{sKo}, s{sCh}, {2*KP_ROW}
          s_lshl_b32 s{sRo}, s{sCh}, 12
          s_lshl_b32 s{sA}, s{sCh}, 2
          s_and_b32 s{sB}, s{sCh}, 0xfffffffe
          s_lshl_b32 s{sB}, s{sB}, 1""")
    vL16 = k.v(); vBd = [k.v() for _ in range(3)]
    k(f"v_lshlrev_b32 v{vL16}, 4, v{vLane}")
    k("s_waitcnt lgkmcnt(0)")
    k(f"""s_add_u32 s{sM}, s{sWS}, s{sA}
          s_addc_u32 s{sM+1}, s{sWS+1}, 0
          s_load_dword s{sSa}, {sr(sM,2)}, {WS['MOD'][0] + 0*2304}
          s_load_dword s{sCa}, {sr(sM,2)}, {WS['MOD'][0] + 1*2304}
          s_load_dword s{sGa}, {sr(sM,2)}, {WS['MOD'][0] + 2*2304}
          s_load_dword s{sDk}, {sr(pD,2)}, s{sB}""")
    stamp(k, 1)
    srd_ws(k, rZ, sWS, "ZT"); srd_ws(k, rK, sWS, "KP"); srd_ws(k, rX, sWS, "XT"); srd_ws(k, rO, sWS, "X1T")
    zq = k.v(16, 4)
    for i in range(4): k(f"buffer_load_dwordx4 {vr(zq+4*i,4)}, v{vL16}, {sr(rZ,4)}, s{sRo} offen offset:{1024*i}")
    C = [0, 64, -8316, -8252]
    bnd = {4: 4, 8: 8, 12: 12}
    for idx, (t, Ln) in enumerate(bnd.items()):
        copy = (64 * t) // 260
        k(f"v_cmp_le_u32 vcc, {Ln}, v{vLane}")
        k(f"v_add_u32 v{vT0}, {1024*t + C[copy+1]}, v{vL16}")
        k(f"v_add_u32 v{vBd[idx]}, {1024*t + C[copy]}, v{vL16}")
        k(f"v_cndmask_b32 v{vBd[idx]}, v{vBd[idx]}, v{vT0}, vcc")
    sSo = k.s()
    for t in range(17):
        copy = (64 * t) // 260
        if t in bnd:
            idx = list(bnd).index(t); va = vBd[idx]; so = 0
        else:
            va = vL16; so = 1024 * t + C[copy]
        assert so >= 0
        if t == 16: k("s_mov_b64 exec, 0xffff")
        k(f"s_add_u32 m0, s{sBase}, {1024*t}")
        k(f"s_add_u32 s{sSo}, s{sKo}, {so}")
        k(f"buffer_load_dwordx4 v{va}, {sr(rK,4)}, s{sSo} offen lds")
        if t == 16: k("s_mov_b64 exec, -1")
    vXo = k.v(); xq = k.v(16, 2)
    k(f"""v_and_b32 v{vT0}, 15, v{vLane}
          v_lshrrev_b32 v{vT1}, 4, v{vLane}
          v_lshlrev_b32 v{vXo}, 5, v{vT0}
          v_lshl_add_u32 v{vXo}, v{vT1}, 3, v{vXo}""")
    for c in range(8): k(f"buffer_load_dwordx2 {vr(xq+2*c,2)}, v{vXo}, {sr(rX,4)}, s{sRo} offen offset:{512*c}")
    vA, vB, vU, vUw = k.v(), k.v(), k.v(), k.v()
    k(f"""v_and_b32 v{vA}, 3, v{vLane}
          v_mul_u32_u24 v{vA}, {KS}, v{vA}
          v_and_b32 v{vB}, 12, v{vLane}
          v_lshl_add_u32 v{vA}, v{vB}, 1, v{vA}
          v_lshl_add_u32 v{vA}, v{vT1}, 4, v{vA}
          v_add_u32 v{vA}, s{sBase}, v{vA}
          s_add_u32 s{sA}, s{sBase}, {UOFF + 480}
          v_lshlrev_b32 v{vB}, 4, v{vT1}
          v_lshlrev_b32 v{vT0}, 5, v{vT0}
          v_sub_u32 v{vB}, v{vB}, v{vT0}
          v_add_u32 v{vB}, s{sA}, v{vB}
          s_add_u32 s{sA}, s{sBase}, {UOFF + 504}
          v_sub_u32 v{vU}, s{sA}, v{vXo}
          s_add_u32 s{sA}, s{sBase}, {UOFF + 1008}
          v_sub_u32 v{vUw}, s{sA}, v{vL16}""")
    fr = k.v(128, 4)
    zz = fr
    for j in range(4): k(f"v_mov_b32 v{zz+j}, 0")
    k(f"""s_add_u32 s{sA}, s{sBase}, {UOFF + 4096}
          v_add_u32 v{vT0}, s{sA}, v{vL16}
          s_mov_b64 exec, 0x3fffffff
          ds_write_b128 v{vT0}, {vr(zz,4)}
          s_mov_b64 exec, -1
          s_waitcnt lgkmcnt(0)""")
    vG, vSa, vDk = k.v(), k.v(), k.v()
    k(f"""v_add_f32 v{vG}, 1.0, s{sCa}
          v_mov_b32 v{vSa}, s{sSa}
          s_and_b32 s{sA}, s{sCh}, 1
          s_lshl_b32 s{sA}, s{sA}, 4
          s_lshr_b32 s{sDk}, s{sDk}, s{sA}
          s_lshl_b32 s{sDk}, s{sDk}, 16
          v_cvt_pk_bf16_f32 v{vG}, v{vG}, v{vG}
          v_and_b32 v{vG}, 0xffff0000, v{vG}""")
    stamp(k, 2)
    e = fr + 8; up = fr + 24
    for i in range(4):
        k(f"s_waitcnt vmcnt({17 + 8 + 3 - i})")
        for j in range(4):
            k(f"v_lshlrev_b32 v{e+2*j}, 16, v{zq+4*i+j}")
            k(f"v_and_b32 v{e+2*j+1}, 0xffff0000, v{zq+4*i+j}")
        for j in range(8): k(f"v_fma_f32 v{e+j}, v{e+j}, v{vG}, v{vSa}")
        o = up + 4 * i
        for j in range(4): k(f"v_cvt_pk_bf16_f32 v{o+j}, v{e+7-2*j}, v{e+6-2*j}")
        k(f"ds_write_b128 v{vUw}, {vr(o,4)} offset:{1024*(3-i)}")
    stamp(k, 3)
    k("s_waitcnt vmcnt(8) lgkmcnt(0)")
    stamp(k, 4)
    acc = k.v(32, 4)
    def FA(buf, sb): return fr + 64 * buf + 4 * sb
    def FB(buf, cb): return fr + 64 * buf + 32 + 4 * cb
    def reads(r):
        buf = r & 1; L_ = []
        order = []
        for i in range(8): order += [("B", i), ("A", i)]
        for kind, i in order:
            if kind == "A":
                L_.append(f"ds_read_b64 {vr(FA(buf,i),2)}, v{vA} offset:{512*i + 64*r}")
                L_.append(f"ds_read_b64 {vr(FA(buf,i)+2,2)}, v{vA} offset:{512*i + 64*r + 8}")
            else:
                L_.append(f"ds_read_b128 {vr(FB(buf,i),4)}, v{vB} offset:{512*(7-i) + 64*r}")
        return L_
    for s_ in reads(0): k(s_)
    pairs = sorted([(sb, cb) for sb in range(8) for cb in range(8 - sb)], key=lambda p: (max(p), p))
    uq = zq
    for r in range(8):
        k("s_waitcnt lgkmcnt(0)")
        nxt = reads(r + 1) if r < 7 else [f"ds_read_b64 {vr(uq+2*c,2)}, v{vU} offset:{512*(7-c)}" for c in range(8)]
        seen = set()
        for (sb, cb) in pairs:
            c = sb + cb
            cc = "0" if (r == 0 and c not in seen) else vr(acc + 4*c, 4)
            seen.add(c)
            k(f"v_mfma_f32_16x16x32_bf16 {vr(acc+4*c,4)}, {vr(FA(r&1,sb),4)}, {vr(FB(r&1,cb),4)}, {cc}")
            if nxt: k(nxt.pop(0))
    stamp(k, 5)
    k("s_waitcnt vmcnt(0) lgkmcnt(0)")
    t4 = fr; op = fr + 16
    for c in range(8):
        tu = t4 + 8 * (c & 1); tx = tu + 4
        k(f"""v_and_b32 v{tu+0}, 0xffff0000, v{uq+2*c+1}
              v_lshlrev_b32 v{tu+1}, 16, v{uq+2*c+1}
              v_and_b32 v{tu+2}, 0xffff0000, v{uq+2*c}
              v_lshlrev_b32 v{tu+3}, 16, v{uq+2*c}
              v_lshlrev_b32 v{tx+0}, 16, v{xq+2*c}
              v_and_b32 v{tx+1}, 0xffff0000, v{xq+2*c}
              v_lshlrev_b32 v{tx+2}, 16, v{xq+2*c+1}
              v_and_b32 v{tx+3}, 0xffff0000, v{xq+2*c+1}""")
        for i in range(4): k(f"v_fma_f32 v{tu+i}, v{tu+i}, s{sDk}, v{acc+4*c+i}")
        for i in range(4): k(f"v_fma_f32 v{tx+i}, v{tu+i}, s{sGa}, v{tx+i}")
        k(f"v_cvt_pk_bf16_f32 v{op+2*c}, v{tx}, v{tx+1}")
        k(f"v_cvt_pk_bf16_f32 v{op+2*c+1}, v{tx+2}, v{tx+3}")
        k(f"buffer_store_dwordx2 {vr(op+2*c,2)}, v{vXo}, {sr(rO,4)}, s{sRo} offen offset:{512*c}")
    stamp_flush(k, sWS, 1, 6, vT0, vT1)
    k("s_endpgm")
    for which in (1, 2):
        k(f"L_k2_w{which}:")
        k.nv = nv0; k.ns = ns0
        pW = k.s(2); rW, rP = k.s(4), k.s(4)
        sU, sQ, sR, sSo, sT = [k.s() for _ in range(5)]
        ldarg(k, pW, f"w{which}")
        first = K2_NC if which == 1 else K2_NC + K2_NW1
        k(f"""s_sub_u32 s{sU}, s2, {first}
              s_mul_i32 s{sU}, s{sU}, 3
              s_add_u32 s{sU}, s{sU}, s{sWv}""")
        vSrc, vRd, vL16 = k.v(), k.v(), k.v()
        fq = k.v(48, 4)
        if which == 1:
            k(f"""s_mul_i32 s{sQ}, s{sU}, 43691
                  s_lshr_b32 s{sQ}, s{sQ}, 19
                  s_mul_i32 s{sT}, s{sQ}, 12
                  s_sub_u32 s{sR}, s{sU}, s{sT}
                  s_mul_i32 s{sSo}, s{sR}, {48*9216}
                  s_lshl_b32 s{sT}, s{sQ}, 8
                  s_add_u32 s{sSo}, s{sSo}, s{sT}
                  v_lshrrev_b32 v{vT0}, 4, v{vLane}
                  v_mul_u32_u24 v{vSrc}, 9216, v{vT0}
                  v_and_b32 v{vT1}, 15, v{vLane}
                  v_lshl_add_u32 v{vSrc}, v{vT1}, 4, v{vSrc}
                  v_lshrrev_b32 v{vRd}, 5, v{vLane}
                  v_lshlrev_b32 v{vRd}, 3, v{vRd}
                  v_bfe_u32 v{vT1}, v{vLane}, 2, 2
                  v_add_u32 v{vRd}, v{vRd}, v{vT1}
                  v_lshlrev_b32 v{vRd}, 8, v{vRd}
                  v_and_b32 v{vT0}, 1, v{vT0}
                  v_lshl_add_u32 v{vRd}, v{vT0}, 5, v{vRd}
                  v_and_b32 v{vT1}, 3, v{vLane}
                  v_lshl_add_u32 v{vRd}, v{vT1}, 3, v{vRd}""")
            rowstep = 4 * 9216
        else:
            k(f"""s_mul_i32 s{sQ}, s{sU}, 58255
                  s_lshr_b32 s{sQ}, s{sQ}, 19
                  s_mul_i32 s{sT}, s{sQ}, 9
                  s_sub_u32 s{sR}, s{sU}, s{sT}
                  s_mul_i32 s{sSo}, s{sQ}, {96*1152}
                  s_lshl_b32 s{sT}, s{sR}, 7
                  s_add_u32 s{sSo}, s{sSo}, s{sT}
                  v_lshrrev_b32 v{vT0}, 3, v{vLane}
                  v_mul_u32_u24 v{vSrc}, 1152, v{vT0}
                  v_and_b32 v{vT1}, 7, v{vLane}
                  v_lshl_add_u32 v{vSrc}, v{vT1}, 4, v{vSrc}
                  v_lshrrev_b32 v{vRd}, 5, v{vLane}
                  v_lshlrev_b32 v{vRd}, 4, v{vRd}
                  v_bfe_u32 v{vT1}, v{vLane}, 4, 1
                  v_lshl_add_u32 v{vRd}, v{vT1}, 2, v{vRd}
                  v_bfe_u32 v{vT1}, v{vLane}, 2, 2
                  v_add_u32 v{vRd}, v{vRd}, v{vT1}
                  v_lshlrev_b32 v{vRd}, 7, v{vRd}
                  v_and_b32 v{vT1}, 3, v{vLane}
                  v_lshl_add_u32 v{vRd}, v{vT1}, 3, v{vRd}""")
            rowstep = 8 * 1152
        k(f"""v_add_u32 v{vRd}, s{sBase}, v{vRd}
              v_lshlrev_b32 v{vL16}, 4, v{vLane}
              s_waitcnt lgkmcnt(0)""")
        stamp(k, 1)
        srd(k, rW, pW, D * F * 2); srd_ws(k, rP, sWS, f"W{which}P")
        for i in range(12):
            k(f"s_add_u32 m0, s{sBase}, {1024*i}")
            k(f"buffer_load_dwordx4 v{vSrc}, {sr(rW,4)}, s{sSo} offen lds")
            if i < 11: k(f"s_add_u32 s{sSo}, s{sSo}, {rowstep}")
        sD = [k.s() for _ in range(4)]
        if which == 1:
            k(f"""s_mul_i32 s{sT}, s{sQ}, 144
                  s_mul_i32 s{sR}, s{sR}, 3
                  s_add_u32 s{sT}, s{sT}, s{sR}
                  s_lshl_b32 s{sD[0]}, s{sT}, 10""")
            for ft in range(1, 4): k(f"s_add_u32 s{sD[ft]}, s{sD[0]}, {ft*36*1024}")
            tstep = 1024
        else:
            sS, sM, sJ, sTl = k.s(), k.s(), k.s(), k.s()
            k(f"""s_mul_i32 s{sS}, s{sQ}, 43691
                  s_lshr_b32 s{sS}, s{sS}, 19
                  s_mul_i32 s{sT}, s{sS}, 12
                  s_sub_u32 s{sTl}, s{sQ}, s{sT}
                  s_mul_i32 s{sTl}, s{sTl}, 27
                  s_mul_i32 s{sS}, s{sS}, {4*324}
                  s_add_u32 s{sTl}, s{sTl}, s{sS}""")
            for mt in range(4):
                k(f"""s_lshl_b32 s{sM}, s{sR}, 2
                      s_add_u32 s{sM}, s{sM}, {mt}
                      s_mul_i32 s{sJ}, s{sM}, 57
                      s_lshr_b32 s{sJ}, s{sJ}, 9
                      s_mul_i32 s{sJ}, s{sJ}, 315
                      s_add_u32 s{sM}, s{sM}, s{sJ}
                      s_add_u32 s{sM}, s{sM}, s{sTl}
                      s_lshl_b32 s{sD[mt]}, s{sM}, 10""")
            tstep = 9216
        for tt in range(3):
            k(f"s_waitcnt vmcnt({8 - 4*tt})")
            stamp(k, 2 + tt)
            for ft in range(4):
                q = fq + 16 * tt + 4 * ft
                o = 4096 * tt + (64 if which == 1 else 32) * ft
                k(f"ds_read_b64_tr_b16 {vr(q,2)}, v{vRd} offset:{o}")
                k(f"ds_read_b64_tr_b16 {vr(q+2,2)}, v{vRd} offset:{o + 1024}")
        for tt in range(3):
            for ft in range(4):
                q = fq + 16 * tt + 4 * ft
                k(f"s_waitcnt lgkmcnt({min(15, 22 - 8*tt - 2*ft)})")
                k(f"buffer_store_dwordx4 {vr(q,4)}, v{vL16}, {sr(rP,4)}, s{sD[ft]} offen {wt}")
                if tt < 2: k(f"s_add_u32 s{sD[ft]}, s{sD[ft]}, {tstep}")
        k("s_waitcnt vmcnt(0)") if STAMPS else None
        stamp_flush(k, sWS, 1, 5, vT0, vT1)
        k("s_endpgm")
    k("L_k2_end:\ns_endpgm")
    return k
```

```python
from common import *
K25_GRID = 128
K25_LDS = 18432 + 2048

def rowsum4(k, v, t):
    k(f"""v_mov_b32 v{t}, v{v}
          v_permlane16_swap_b32 v{v}, v{t}
          v_add_f32 v{v}, v{v}, v{t}
          v_mov_b32 v{t}, v{v}
          v_permlane32_swap_b32 v{v}, v{t}
          v_add_f32 v{v}, v{v}, v{t}""")

def gen_k25():
    k = Kernel("k25_kernel")
    sWS = k.s(2); sWv, sSo, sT, sP0, sO = [k.s() for _ in range(5)]
    rI, rM, rY, rX = k.s(4), k.s(4), k.s(4), k.s(4)
    vLane, vT0, vT1, vSrc, vRd, vPo, vSt, vRw, vRr = [k.v() for _ in range(9)]
    k(f"""s_cmp_ge_u32 s2, {K25_GRID}
          s_cbranch_scc1 L_k25_end""")
    stamp(k, 0)
    ldarg(k, sWS, "ws")
    k(f"""v_lshrrev_b32 v{vT0}, 6, v0
          v_and_b32 v{vLane}, 63, v0
          v_readfirstlane_b32 s{sWv}, v{vT0}
          v_lshrrev_b32 v{vT0}, 1, v{vLane}
          v_lshlrev_b32 v{vSrc}, 12, v{vT0}
          v_and_b32 v{vT1}, 1, v{vLane}
          v_lshl_add_u32 v{vSrc}, v{vT1}, 4, v{vSrc}
          s_mul_i32 s{sSo}, s{sWv}, {96*4096}
          s_lshl_b32 s{sT}, s2, 5
          s_add_u32 s{sSo}, s{sSo}, s{sT}
          s_mul_i32 s{sT}, s{sWv}, 3072
          s_mul_i32 s{sP0}, s{sWv}, 384
          v_lshrrev_b32 v{vT1}, 4, v{vLane}
          v_lshlrev_b32 v{vPo}, 5, v{vT1}
          s_waitcnt lgkmcnt(0)""")
    stamp(k, 1)
    srd_ws(k, rI, sWS, "X1T"); srd_ws(k, rM, sWS, "MOD"); srd_ws(k, rY, sWS, "Y2F"); srd_ws(k, rX, sWS, "X1F")
    for i in range(3):
        k(f"s_add_u32 m0, s{sT}, {1024*i}")
        k(f"buffer_load_dwordx4 v{vSrc}, {sr(rI,4)}, s{sSo} offen lds")
        if i < 2: k(f"s_add_u32 s{sSo}, s{sSo}, {32*4096}")
    gq = k.v(24, 4); bq = k.v(24, 4)
    k(f"s_add_u32 s{sO}, s{sP0}, {4*2304}")
    k(f"s_add_u32 s{sP0}, s{sP0}, {3*2304}")
    for i in range(3):
        for h in range(2):
            k(f"buffer_load_dwordx4 {vr(gq+8*i+4*h,4)}, v{vPo}, {sr(rM,4)}, s{sO} offen offset:{128*i+16*h}")
    for i in range(3):
        for h in range(2):
            k(f"buffer_load_dwordx4 {vr(bq+8*i+4*h,4)}, v{vPo}, {sr(rM,4)}, s{sP0} offen offset:{128*i+16*h}")
    k(f"""v_lshlrev_b32 v{vRd}, 3, v{vT1}
          v_bfe_u32 v{vT0}, v{vLane}, 2, 2
          v_add_u32 v{vRd}, v{vRd}, v{vT0}
          v_lshlrev_b32 v{vRd}, 5, v{vRd}
          v_and_b32 v{vT0}, 3, v{vLane}
          v_lshl_add_u32 v{vRd}, v{vT0}, 3, v{vRd}
          v_add_u32 v{vRd}, s{sT}, v{vRd}
          v_lshlrev_b32 v{vSt}, 9, v{vT1}
          v_and_b32 v{vT0}, 15, v{vLane}
          v_lshl_add_u32 v{vSt}, v{vT0}, 4, v{vSt}
          v_lshlrev_b32 v{vRr}, 3, v{vT0}
          v_add_u32 v{vRr}, 18432, v{vRr}
          s_lshl_b32 s{sSo}, s{sWv}, 7
          v_add_u32 v{vRw}, s{sSo}, v{vRr}
          s_lshr_b32 s{sO}, s2, 1
          s_mul_i32 s{sO}, s{sO}, 36
          s_mul_i32 s{sSo}, s{sWv}, 6
          s_add_u32 s{sO}, s{sO}, s{sSo}
          s_lshl_b32 s{sO}, s{sO}, 10
          s_and_b32 s{sSo}, s2, 1
          s_lshl_b32 s{sSo}, s{sSo}, 8
          s_add_u32 s{sO}, s{sO}, s{sSo}
          s_waitcnt vmcnt(12)""")
    stamp(k, 2)
    raw = k.v(12, 4); x = k.v(24, 4)
    for i in range(3):
        k(f"ds_read_b64_tr_b16 {vr(raw+4*i,2)}, v{vRd} offset:{1024*i}")
        k(f"ds_read_b64_tr_b16 {vr(raw+4*i+2,2)}, v{vRd} offset:{1024*i+128}")
    k("s_waitcnt lgkmcnt(0)")
    sO2 = [k.s() for _ in range(3)]
    for i in range(3): k(f"s_add_u32 s{sO2[i]}, s{sO}, {2048*i}")
    for i in range(3): k(f"buffer_store_dwordx4 {vr(raw+4*i,4)}, v{vSt}, {sr(rX,4)}, s{sO2[i]} offen")
    for j in range(12):
        k(f"v_lshlrev_b32 v{x+2*j}, 16, v{raw+j}")
        k(f"v_and_b32 v{x+2*j+1}, 0xffff0000, v{raw+j}")
    S = k.v(2, 2); pr = k.v(12, 2); vMu, vRs = k.v(), k.v()
    def stats(rnd):
        k(f"v_add_f32 v{S}, v{x}, v{x+1}")
        k(f"v_mul_f32 v{S+1}, v{x}, v{x}")
        k(f"v_fmac_f32 v{S+1}, v{x+1}, v{x+1}")
        for j in range(2, 24):
            k(f"v_add_f32 v{S}, v{S}, v{x+j}")
            k(f"v_fmac_f32 v{S+1}, v{x+j}, v{x+j}")
        rowsum4(k, S, vT0); rowsum4(k, S + 1, vT1)
        k(f"ds_write_b64 v{vRw}, {vr(S,2)} offset:{1024*rnd}")
        k("s_waitcnt lgkmcnt(0)\ns_barrier")
        for w in range(6): k(f"ds_read_b64 {vr(pr+2*w,2)}, v{vRr} offset:{1024*rnd + 128*w}")
        k("s_waitcnt lgkmcnt(0)")
        for h in range(2):
            k(f"v_add_f32 v{pr+h}, v{pr+h}, v{pr+2+h}")
            k(f"v_add_f32 v{pr+4+h}, v{pr+4+h}, v{pr+6+h}")
            k(f"v_add_f32 v{pr+8+h}, v{pr+8+h}, v{pr+10+h}")
            k(f"v_add_f32 v{pr+h}, v{pr+h}, v{pr+4+h}")
            k(f"v_add_f32 v{pr+h}, v{pr+h}, v{pr+8+h}")
        k(f"""v_mul_f32 v{vMu}, {f2u(1.0/576)}, v{pr}
              v_mul_f32 v{vRs}, {f2u(1.0/576)}, v{pr+1}
              v_fma_f32 v{vRs}, -v{vMu}, v{vMu}, v{vRs}
              v_max_f32 v{vRs}, 0, v{vRs}
              v_add_f32 v{vRs}, {f2u(1e-5)}, v{vRs}
              v_rsq_f32 v{vRs}, v{vRs}
              v_mul_f32 v{vMu}, v{vMu}, v{vRs}""")
        for j in range(24): k(f"v_fma_f32 v{x+j}, v{x+j}, v{vRs}, -v{vMu}")
    stats(0)
    stamp(k, 3)
    k("s_waitcnt vmcnt(3)")
    stamp(k, 4)
    for j in range(24): k(f"v_add_f32 v{gq+j}, 1.0, v{gq+j}")
    for j in range(12): k(f"v_cvt_pk_bf16_f32 v{pr+j}, v{gq+2*j}, v{gq+2*j+1}")
    for j in range(12):
        k(f"v_lshlrev_b32 v{gq+2*j}, 16, v{pr+j}")
        k(f"v_and_b32 v{gq+2*j+1}, 0xffff0000, v{pr+j}")
    for j in range(24): k(f"v_fma_f32 v{x+j}, v{x+j}, v{gq+j}, v{bq+j}")
    stats(1)
    for j in range(12): k(f"v_cvt_pk_bf16_f32 v{gq+j}, v{x+2*j}, v{x+2*j+1}")
    for i in range(3): k(f"buffer_store_dwordx4 {vr(gq+4*i,4)}, v{vSt}, {sr(rY,4)}, s{sO2[i]} offen")
    stamp_flush(k, sWS, 2, 5, vT0, vT1)
    k("L_k25_end:\ns_endpgm")
    return k
```

```python
from common import *
K3_GRID = 256
SLOT = 24576
NRING = 6
BIAS_OFF = SLOT * NRING
K3_LDS = BIAS_OFF + 1280
GK1 = -2.302208198
GK2 = GK1 * 0.044715

def slot_units(i):
    return 24 if i < 18 else 18
def slot_steps(i):
    if i < 9: return 0, list(range(4*i, 4*i+4))
    if i < 18: return 1 + (i-9)//3, list(range(12*((i-9) % 3), 12*((i-9) % 3) + 12))
    return 4, list(range(18*(i-18), 18*(i-18) + 18))

def gelu_ops(acc, X, T, A, P, sK2, vK1, store):
    ops = []
    for g in range(4):
        x = [acc + 4*g + j for j in range(4)]
        t = T[g % 2]; a = A[g % 2]
        for j in range(4): ops.append(f"v_mul_f32 v{t+j}, v{x[j]}, v{x[j]}")
        for j in range(4): ops.append(f"v_fma_f32 v{t+j}, v{t+j}, s{sK2}, v{vK1}")
        for j in range(4): ops.append(f"v_mul_f32 v{a+j}, v{x[j]}, v{t+j}")
        for j in range(4): ops.append(f"v_exp_f32 v{a+j}, v{a+j}")
        for j in range(4): ops.append(f"v_add_f32 v{a+j}, 1.0, v{a+j}")
        for j in range(4): ops.append(f"v_rcp_f32 v{a+j}, v{a+j}")
        for j in range(4): ops.append(f"v_mul_f32 v{a+j}, v{x[j]}, v{a+j}")
        ops.append(f"v_cvt_pk_bf16_f32 v{P+2*g}, v{a}, v{a+1}")
        ops.append(f"v_cvt_pk_bf16_f32 v{P+2*g+1}, v{a+2}, v{a+3}")
        if g % 2 == 1: ops += store(g // 2)
    return ops

def gen_k3():
    k = Kernel("k3_kernel")
    sWS = k.s(2); pB = k.s(2)
    rY, rW, rH, rB = k.s(4), k.s(4), k.s(4), k.s(4)
    sWv, sTb, sFb, sF0, sT, sU = [k.s() for _ in range(6)]
    sTok = [k.s(), k.s()]; sWa = k.s(); sWb = [k.s() for _ in range(3)]; sWl = [k.s() for _ in range(3)]
    sM0, sSo, sH, sK2 = k.s(), k.s(), k.s(), k.s()
    m9 = k.s(2)
    vLane, vT0, vT1, vL16, vW, vTk, vBi, vSt, vK1 = [k.v() for _ in range(9)]
    k(f"""s_cmp_ge_u32 s2, {K3_GRID}
          s_cbranch_scc1 L_k3_end""")
    stamp(k, 0)
    ldarg(k, sWS, "ws"); ldarg(k, pB, "b1")
    k(f"""v_lshrrev_b32 v{vT0}, 6, v0
          v_and_b32 v{vLane}, 63, v0
          v_readfirstlane_b32 s{sWv}, v{vT0}
          v_lshlrev_b32 v{vL16}, 4, v{vLane}
          s_lshr_b32 s{sT}, s2, 2
          s_and_b32 s{sT}, s{sT}, 1
          s_lshl_b32 s{sT}, s{sT}, 3
          s_lshr_b32 s{sTb}, s2, 5
          s_add_u32 s{sTb}, s{sTb}, s{sT}
          s_and_b32 s{sFb}, s2, 3
          s_lshl_b32 s{sFb}, s{sFb}, 2
          s_lshr_b32 s{sT}, s2, 3
          s_and_b32 s{sT}, s{sT}, 3
          s_add_u32 s{sFb}, s{sFb}, s{sT}
          s_mul_i32 s{sF0}, s{sFb}, 9""")
    k(f"""s_lshl_b32 s{sT}, s{sTb}, 2
          s_lshr_b32 s{sU}, s{sWv}, 2
          s_add_u32 s{sT}, s{sT}, s{sU}
          s_mul_i32 s{sT}, s{sT}, 36
          s_and_b32 s{sSo}, s{sWv}, 3
          s_add_u32 s{sT}, s{sT}, s{sSo}
          s_lshl_b32 s{sTok[0]}, s{sT}, 10
          s_add_u32 s{sTok[1]}, s{sTok[0]}, {2*36*1024}
          s_add_u32 s{sT}, s{sF0}, s{sU}
          s_mul_i32 s{sT}, s{sT}, 36
          s_add_u32 s{sT}, s{sT}, s{sSo}
          s_lshl_b32 s{sWa}, s{sT}, 10
          s_mul_i32 s{sT}, s{sF0}, 36
          s_add_u32 s{sT}, s{sT}, s{sWv}
          s_lshl_b32 s{sWb[0]}, s{sT}, 10
          s_add_u32 s{sWb[1]}, s{sWb[0]}, {8*1024}
          s_add_u32 s{sWb[2]}, s{sWb[0]}, {(36+4)*1024}
          s_cmp_ge_u32 s{sWv}, 4
          s_cselect_b32 s{sU}, {24*1024}, 0
          s_add_u32 s{sWb[1]}, s{sWb[1]}, s{sU}
          s_add_u32 s{sWl[0]}, s{sWb[0]}, {8*36*1024}
          s_add_u32 s{sWl[1]}, s{sWl[0]}, {8*1024}
          s_add_u32 s{sWl[2]}, s{sWl[0]}, {16*1024}
          s_lshl_b32 s{sM0}, s{sWv}, 10
          s_cmp_lt_u32 s{sWv}, 2
          s_cselect_b64 {sr(m9,2)}, -1, 0
          s_waitcnt lgkmcnt(0)""")
    stamp(k, 1)
    srd_ws(k, rY, sWS, "Y2F"); srd_ws(k, rW, sWS, "W1P"); srd_ws(k, rH, sWS, "HF"); srd(k, rB, pB, F * 2)
    vm = []
    def dma(i):
        base = (i % NRING) * SLOT
        out = []
        for q in range(3):
            if i < 9:
                src, r = (f"s{sTok[q]}, {4096*i}", rY) if q < 2 else (f"s{sWa}, {4096*i}", rW)
            elif i < 18:
                p = 1 + (i-9)//3; c = (i-9) % 3
                src, r = f"s{sWb[q]}, {(2*p*36 + 12*c)*1024}", rW
            else:
                src, r = f"s{sWl[q]}, {18*(i-18)*1024}", rW
            seq = [f"s_add_u32 m0, s{sM0}, {base + 8192*q}", f"s_add_u32 s{sSo}, {src}"]
            if i >= 18 and q == 2:
                seq += [f"s_mov_b64 exec, {sr(m9,2)}", f"buffer_load_dwordx4 v{vL16}, {sr(r,4)}, s{sSo} offen lds", "s_mov_b64 exec, -1"]
            else:
                seq += [f"buffer_load_dwordx4 v{vL16}, {sr(r,4)}, s{sSo} offen lds"]
            out.append((seq, ("dma", i)))
        return out
    vBl = k.v()
    k(f"""v_lshlrev_b32 v{vT0}, 1, v0
          s_mul_i32 s{sT}, s{sFb}, 576
          v_cmp_gt_u32 vcc, 288, v0
          v_add_u32 v{vT1}, 0x10000, v{vT0}
          v_cndmask_b32 v{vT0}, v{vT1}, v{vT0}, vcc
          buffer_load_ushort v{vBl}, v{vT0}, {sr(rB,4)}, s{sT} offen""")
    vm.append(("bias",))
    for i in range(5):
        for seq, tag in dma(i):
            for s_ in seq: k(s_)
            vm.append(tag)
    k(f"""s_and_b32 s{sT}, s{sWv}, 3
          s_lshl_b32 s{sU}, s{sT}, 12
          v_add_u32 v{vTk}, s{sU}, v{vL16}
          v_lshrrev_b32 v{vT1}, 5, v{vLane}
          v_lshlrev_b32 v{vBi}, 4, v{vT1}
          v_add_u32 v{vBi}, {BIAS_OFF}, v{vBi}
          v_bfe_u32 v{vT0}, v{vLane}, 4, 1
          v_lshlrev_b32 v{vSt}, 10, v{vT0}
          v_lshl_add_u32 v{vSt}, v{vT1}, 8, v{vSt}
          v_and_b32 v{vT0}, 15, v{vLane}
          v_lshl_add_u32 v{vSt}, v{vT0}, 4, v{vSt}
          s_lshl_b32 s{sH}, s{sTb}, 2
          s_add_u32 s{sH}, s{sH}, s{sT}
          s_mul_i32 s{sH}, s{sH}, 144
          s_add_u32 s{sH}, s{sH}, s{sF0}
          s_lshl_b32 s{sH}, s{sH}, 11
          s_mov_b32 s{sK2}, {f2u(GK2)}
          v_mov_b32 v{vK1}, {f2u(GK1)}
          v_lshlrev_b32 v{vT0}, 2, v0
          v_add_u32 v{vT0}, {BIAS_OFF}, v{vT0}
          s_waitcnt vmcnt(15)
          v_lshlrev_b32 v{vBl}, 16, v{vBl}
          s_mov_b64 exec, vcc
          ds_write_b32 v{vT0}, v{vBl}
          s_mov_b64 exec, -1""")
    vW2, vW3, vTk2, vTk3 = k.v(), k.v(), k.v(), k.v()
    k(f"""v_add_u32 v{vW2}, {2*SLOT}, v{vL16}
          v_add_u32 v{vW3}, {4*SLOT}, v{vL16}
          v_add_u32 v{vTk2}, {2*SLOT}, v{vTk}
          v_add_u32 v{vTk3}, {4*SLOT}, v{vTk}""")
    tok = k.v(144, 4); acc = [k.v(16, 4), k.v(16, 4)]
    RW = 6
    wr = k.v(4 * RW, 4)
    T = [k.v(4), k.v(4)]; A = [k.v(4), k.v(4)]; P = k.v(8, 4)
    sHt = k.s()
    k(f"""s_cmp_ge_u32 s{sWv}, 4
          s_cbranch_scc1 L_k3_g1""")
    vm0 = list(vm)
    def stream(fp):
        vm = list(vm0)
        lg = []
        def ring_addr(i, off, base0, b2, b3):
            r = i % NRING; o = (r % 2) * SLOT + off
            return [base0, b2, b3][r // 2], o
        steps = []
        for i in range(20):
            tl, ks = slot_steps(i)
            if tl == 4 and fp == 1: continue
            for n_, t in enumerate(ks):
                if i < 9: woff = (16 + fp*4 + n_) * 1024
                elif i < 18: woff = (fp*12 + n_) * 1024
                else: woff = n_ * 1024
                steps.append(dict(slot=i, tile=tl, t=t, woff=woff, toff=(n_*1024 if i < 9 else None)))
        for n_, s_ in enumerate(steps): s_["n"] = n_
        def wait_vm(tagpred):
            last = max([j for j, t in enumerate(vm) if tagpred(t)], default=-1)
            n = len(vm) - 1 - last
            assert n <= 63
            k(f"s_waitcnt vmcnt({n})")
            del vm[:last + 1]
        def wait_lg(tags):
            idx = [j for j, t in enumerate(lg) if t in tags]
            if not idx: return
            last = max(idx); n = len(lg) - 1 - last
            k(f"s_waitcnt lgkmcnt({min(n, 15)})")
            del lg[:len(lg) - min(n, 15)]
        def issue_read(s_):
            b, o = ring_addr(s_["slot"], s_["woff"], vL16, vW2, vW3)
            k(f"ds_read_b128 {vr(wr + 4*(s_['n'] % RW), 4)}, v{b} offset:{o}"); lg.append(("w", s_["n"]))
            if s_["toff"] is not None:
                b, o = ring_addr(s_["slot"], s_["toff"], vTk, vTk2, vTk3)
                k(f"ds_read_b128 {vr(tok + 4*s_['t'], 4)}, v{b} offset:{o}"); lg.append(("t", s_["t"]))
        def f_local(tl): return 8 if tl == 4 else 2*tl + fp
        def bias_reads(tl):
            for q in range(4):
                k(f"ds_read_b128 {vr(acc[tl % 2] + 4*q, 4)}, v{vBi} offset:{f_local(tl)*128 + 32*q}"); lg.append(("b", tl))
        def mk_store(tl):
            def st(AB):
                o = []
                if AB == 0: o.append(f"s_add_u32 s{sHt}, s{sH}, {f_local(tl)*2048}")
                o.append(f"buffer_store_dwordx4 {vr(P+4*AB,4)}, v{vSt}, {sr(rH,4)}, s{sHt} offen offset:{512*AB}")
                return o
            return st
        D_ = RW - 1
        fill = []
        rd = 0
        cur = 0
        pending_bias = None
        for i in range(20):
            if i == 0:
                wait_vm(lambda t: t[0] == "dma" and t[1] <= 1)
                k("s_waitcnt lgkmcnt(0)"); lg.clear()
                if fp == 0: stamp(k, 2)
            elif i + 1 < 20:
                wait_vm(lambda t: t[0] == "dma" and t[1] <= i + 1)
            k("s_barrier")
            if i == 0:
                if fp == 0: stamp(k, 3)
                bias_reads(0)
            if fp == 0 and i in (9, 12, 18): stamp(k, {9: 4, 12: 5, 18: 6}[i])
            dq = dma(i + 5) if i + 5 < 20 else []
            mine = [s_ for s_ in steps if s_["slot"] == i]
            if not mine:
                for seq, tag in dq:
                    for s_ in seq: k(s_)
                    vm.append(tag)
                for o in fill:
                    k(o)
                    if o.startswith("buffer_store"): vm.append(("st",))
                fill = []
                continue
            for j, s_ in enumerate(mine):
                while rd < len(steps) and rd <= s_["n"] + D_ - 1 + (1 if s_["n"] == 0 else 0) and steps[rd]["slot"] <= i + 1 and (rd - s_["n"]) < RW:
                    issue_read(steps[rd]); rd += 1
                tl = s_["tile"]
                tags = {("w", s_["n"]), ("t", s_["t"])}
                if s_["t"] == 0: tags.add(("b", tl))
                wait_lg(tags)
                k(f"v_mfma_f32_32x32x16_bf16 {vr(acc[tl%2],16)}, {vr(wr + 4*(s_['n'] % RW),4)}, {vr(tok + 4*s_['t'],4)}, {vr(acc[tl%2],16)}")
                if dq and j % 1 == 0:
                    seq, tag = dq.pop(0)
                    for x_ in seq: k(x_)
                    vm.append(tag)
                if fill and s_["t"] >= 1:
                    rem = max(1, 31 - s_["t"] + 1)
                    nf = -(-len(fill) // rem)
                    for _ in range(min(nf, len(fill))):
                        o = fill.pop(0); k(o)
                        if o.startswith("buffer_store"): vm.append(("st",))
                last_tile = 4 if fp == 0 else 3
                if s_["t"] == 32 and tl < last_tile:
                    assert not fill
                    bias_reads(tl + 1)
                if s_["t"] == 35:
                    fill = gelu_ops(acc[tl % 2], None, T, A, P, sK2, vK1, mk_store(tl))
            assert not dq
        if fp == 0: stamp(k, 7)
        for o in fill: k(o)
        if fp == 0: stamp_flush(k, sWS, 3, 8, vT0, vT1)
        k("s_endpgm")
    stream(0)
    k("L_k3_g1:")
    stream(1)
    k("L_k3_end:\ns_endpgm")
    return k
```

```python
from common import *
K4_GRID = 256
SLOT4 = 36864
K4_LDS = 4 * SLOT4

def gen_k4():
    k = Kernel("k4_kernel")
    sWS = k.s(2)
    rW, rH, rP = k.s(4), k.s(4), k.s(4)
    sWv, sTb, sS, sJ, sT, sWb, sHb, sPb, sM0, sSo, sSo2 = [k.s() for _ in range(11)]
    vLane, vT0, vT1, vL16, vB1, vB2 = [k.v() for _ in range(6)]
    k(f"""s_cmp_ge_u32 s2, {K4_GRID}
          s_cbranch_scc1 L_k4_end""")
    stamp(k, 0)
    ldarg(k, sWS, "ws")
    k(f"""v_lshrrev_b32 v{vT0}, 6, v0
          v_and_b32 v{vLane}, 63, v0
          v_readfirstlane_b32 s{sWv}, v{vT0}
          v_lshlrev_b32 v{vL16}, 4, v{vLane}
          s_lshr_b32 s{sT}, s2, 2
          s_and_b32 s{sT}, s{sT}, 1
          s_lshl_b32 s{sT}, s{sT}, 3
          s_lshr_b32 s{sTb}, s2, 5
          s_add_u32 s{sTb}, s{sTb}, s{sT}
          s_and_b32 s{sS}, s2, 3
          s_lshr_b32 s{sJ}, s2, 3
          s_and_b32 s{sJ}, s{sJ}, 3
          s_lshl_b32 s{sT}, s{sS}, 2
          s_add_u32 s{sT}, s{sT}, s{sJ}
          s_mul_i32 s{sWb}, s{sT}, 324
          s_add_u32 s{sWb}, s{sWb}, s{sWv}
          s_lshl_b32 s{sWb}, s{sWb}, 10
          s_lshl_b32 s{sT}, s{sTb}, 2
          s_add_u32 s{sT}, s{sT}, s{sWv}
          s_mul_i32 s{sHb}, s{sT}, 144
          s_mul_i32 s{sSo}, s{sS}, 36
          s_add_u32 s{sHb}, s{sHb}, s{sSo}
          s_lshl_b32 s{sHb}, s{sHb}, 11
          s_lshl_b32 s{sT}, s{sT}, 1
          s_lshl_b32 s{sSo}, s{sS}, 7
          s_add_u32 s{sT}, s{sT}, s{sSo}
          s_mul_i32 s{sPb}, s{sT}, 36
          s_mul_i32 s{sSo}, s{sJ}, 9
          s_add_u32 s{sPb}, s{sPb}, s{sSo}
          s_lshl_b32 s{sPb}, s{sPb}, 10
          s_lshl_b32 s{sM0}, s{sWv}, 10
          v_add_u32 v{vB1}, {SLOT4*1 + 18432}, v{vL16}
          v_add_u32 v{vB2}, {SLOT4*3}, v{vL16}
          s_waitcnt lgkmcnt(0)""")
    stamp(k, 1)
    srd_ws(k, rW, sWS, "W2P"); srd_ws(k, rH, sWS, "HF"); srd_ws(k, rP, sWS, "PART")
    HR = 12
    hr = k.v(8 * HR, 4); af = [k.v(36, 4), k.v(36, 4)]
    vm = []; lg = []
    def dma(i):
        out = []
        for q in range(9):
            out.append(([f"s_add_u32 m0, s{sM0}, {(i % 4)*SLOT4 + 4096*q}", f"s_add_u32 s{sSo}, s{sWb}, {(36*i + 4*q)*1024}",
                         f"buffer_load_dwordx4 v{vL16}, {sr(rW,4)}, s{sSo} offen lds"], ("dma", i)))
        return out
    def hload(T):
        b = hr + 8 * (T % HR)
        k(f"s_add_u32 s{sSo2}, s{sHb}, {2048*T}")
        k(f"buffer_load_dwordx4 {vr(b,4)}, v{vL16}, {sr(rH,4)}, s{sSo2} offen"); vm.append(("h", T))
        k(f"buffer_load_dwordx4 {vr(b+4,4)}, v{vL16}, {sr(rH,4)}, s{sSo2} offen offset:1024"); vm.append(("h", T))
    def emit_dma(d):
        for x in d[0]: k(x)
        vm.append(d[1])
    def wait_vm(pred):
        idx = [j for j, t in enumerate(vm) if pred(t)]
        if not idx: return
        last = max(idx); n = len(vm) - 1 - last
        assert n <= 63, n
        k(f"s_waitcnt vmcnt({n})")
        del vm[:last + 1]
    def aread(T, m):
        i = T // 4; off = (i % 4) * SLOT4 + ((T % 4) * 9 + m) * 1024
        if off < SLOT4 + 18432: b, o = vL16, off
        elif off < 3 * SLOT4: b, o = vB1, off - (SLOT4 + 18432)
        else: b, o = vB2, off - 3 * SLOT4
        assert o < 65536
        k(f"ds_read_b128 {vr(af[T % 2] + 4*m, 4)}, v{b} offset:{o}"); lg.append((T, m))
    def wait_lg(tag):
        if tag not in lg: return
        last = lg.index(tag); n = len(lg) - 1 - last
        k(f"s_waitcnt lgkmcnt({min(n,15)})")
        del lg[:len(lg) - min(n, 15)]
    d0, d1, d2 = dma(0), dma(1), dma(2)
    for d in d0: emit_dma(d)
    for T in range(4): hload(T)
    for d in d1: emit_dma(d)
    for T in range(4, 8): hload(T)
    for d in d2: emit_dma(d)
    for T in range(8, 11): hload(T)
    for T in range(36):
        i = T // 4
        if T % 4 == 0:
            wait_vm(lambda t: t[0] == "dma" and t[1] <= min(i + 1, 8))
            if T == 0: stamp(k, 2)
            k("s_barrier")
            if T == 0:
                stamp(k, 3)
                for m in range(9): aread(0, m)
            if T == 16: stamp(k, 4)
            dq = dma(i + 3) if i + 3 < 9 else []
        wait_vm(lambda t: t == ("h", T))
        n_ = 0
        for m in range(9):
            wait_lg((T, m))
            for n in range(2):
                a = 4 * (2 * m + n)
                c = "0" if T == 0 else ar(a, 4)
                k(f"v_mfma_f32_16x16x32_bf16 {ar(a,4)}, {vr(af[T%2]+4*m,4)}, {vr(hr + 8*(T % HR) + 4*n,4)}, {c}")
                if n == 0 and T + 1 < 36: aread(T + 1, m)
                if n == 1 and m == 0 and T + 11 < 36: hload(T + 11)
                if n == 1 and m in (2, 4, 6) and dq: emit_dma(dq.pop(0))
    stamp(k, 5)
    for m in range(9):
        for n in range(2):
            k(f"s_add_u32 s{sSo}, s{sPb}, {(36*n + m)*1024}")
            k(f"buffer_store_dwordx4 {ar(4*(2*m+n),4)}, v{vL16}, {sr(rP,4)}, s{sSo} offen")
    stamp_flush(k, sWS, 4, 6, vT0, vT1)
    k("L_k4_end:\ns_endpgm")
    return k

K5_GRID = 128
def gen_k5():
    k = Kernel("k5_kernel")
    sWS = k.s(2); pB = k.s(2); pO = k.s(2)
    rP, rX, rM, rB, rO = k.s(4), k.s(4), k.s(4), k.s(4), k.s(4)
    sWv, sT, sP, sX, sG, sB, sO = [k.s() for _ in range(7)]
    sPs = [k.s() for _ in range(4)]
    vLane, vT0, vT1, vL16, vX, vG, vB, vO = [k.v() for _ in range(8)]
    k(f"""s_cmp_ge_u32 s2, {K5_GRID}
          s_cbranch_scc1 L_k5_end""")
    stamp(k, 0)
    ldarg(k, sWS, "ws"); ldarg(k, pB, "b2"); ldarg(k, pO, "out")
    k(f"""v_lshrrev_b32 v{vT0}, 6, v0
          v_and_b32 v{vLane}, 63, v0
          v_readfirstlane_b32 s{sWv}, v{vT0}
          v_lshlrev_b32 v{vL16}, 4, v{vLane}
          v_and_b32 v{vT0}, 15, v{vLane}
          v_lshrrev_b32 v{vT1}, 4, v{vLane}
          v_lshlrev_b32 v{vG}, 4, v{vT1}
          v_lshlrev_b32 v{vB}, 3, v{vT1}
          v_mul_u32_u24 v{vO}, 1152, v{vT0}
          v_add_u32 v{vO}, v{vO}, v{vB}
          v_lshlrev_b32 v{vX}, 4, v{vT0}
          v_lshrrev_b32 v{vT0}, 5, v{vLane}
          v_lshl_add_u32 v{vX}, v{vT0}, 9, v{vX}
          v_and_b32 v{vT1}, 1, v{vT1}
          v_lshl_add_u32 v{vX}, v{vT1}, 3, v{vX}
          s_lshl_b32 s{sT}, s{sWv}, 2
          s_mul_i32 s{sP}, s2, 36
          s_add_u32 s{sP}, s{sP}, s{sT}
          s_lshl_b32 s{sPs[0]}, s{sP}, 10
          s_add_u32 s{sPs[1]}, s{sPs[0]}, {128*36*1024}
          s_add_u32 s{sPs[2]}, s{sPs[0]}, {2*128*36*1024}
          s_add_u32 s{sPs[3]}, s{sPs[0]}, {3*128*36*1024}
          s_lshr_b32 s{sX}, s2, 1
          s_mul_i32 s{sX}, s{sX}, 36
          s_add_u32 s{sX}, s{sX}, s{sT}
          s_lshl_b32 s{sX}, s{sX}, 10
          s_and_b32 s{sG}, s2, 1
          s_lshl_b32 s{sG}, s{sG}, 8
          s_add_u32 s{sX}, s{sX}, s{sG}
          s_lshl_b32 s{sG}, s{sWv}, 8
          s_add_u32 s{sG}, s{sG}, {5*2304}
          s_lshl_b32 s{sB}, s{sWv}, 7
          s_mul_i32 s{sO}, s2, {16*1152}
          s_add_u32 s{sO}, s{sO}, s{sB}
          s_waitcnt lgkmcnt(0)""")
    stamp(k, 1)
    srd_ws(k, rP, sWS, "PART"); srd_ws(k, rX, sWS, "X1F"); srd_ws(k, rM, sWS, "MOD"); srd(k, rB, pB, D * 2); srd(k, rO, pO, L * D * 2)
    pq = k.v(64, 4); xq = k.v(8, 2); gq = k.v(16, 4); bq = k.v(8, 2); t = k.v(8, 2); o = k.v(8, 2)
    for mm in range(4):
        for s_ in range(4): k(f"buffer_load_dwordx4 {vr(pq+16*mm+4*s_,4)}, v{vL16}, {sr(rP,4)}, s{sPs[s_]} offen offset:{1024*mm}")
        k(f"buffer_load_dwordx2 {vr(xq+2*mm,2)}, v{vX}, {sr(rX,4)}, s{sX} offen offset:{1024*mm}")
        k(f"buffer_load_dwordx4 {vr(gq+4*mm,4)}, v{vG}, {sr(rM,4)}, s{sG} offen offset:{64*mm}")
        k(f"buffer_load_dwordx2 {vr(bq+2*mm,2)}, v{vB}, {sr(rB,4)}, s{sB} offen offset:{32*mm}")
    for mm in range(4):
        k(f"s_waitcnt vmcnt({7*(3-mm) + mm})")
        if mm == 0: stamp(k, 2)
        p = pq + 16 * mm
        for i in range(4):
            k(f"v_add_f32 v{p+i}, v{p+i}, v{p+4+i}")
            k(f"v_add_f32 v{p+8+i}, v{p+8+i}, v{p+12+i}")
        for h in range(2):
            k(f"v_lshlrev_b32 v{t+2*h}, 16, v{bq+2*mm+h}")
            k(f"v_and_b32 v{t+2*h+1}, 0xffff0000, v{bq+2*mm+h}")
            k(f"v_lshlrev_b32 v{t+4+2*h}, 16, v{xq+2*mm+h}")
            k(f"v_and_b32 v{t+4+2*h+1}, 0xffff0000, v{xq+2*mm+h}")
        for i in range(4): k(f"v_add_f32 v{p+i}, v{p+i}, v{p+8+i}")
        for i in range(4): k(f"v_add_f32 v{p+i}, v{p+i}, v{t+i}")
        for i in range(4): k(f"v_fma_f32 v{p+i}, v{p+i}, v{gq+4*mm+i}, v{t+4+i}")
        k(f"v_cvt_pk_bf16_f32 v{o+2*mm}, v{p}, v{p+1}")
        k(f"v_cvt_pk_bf16_f32 v{o+2*mm+1}, v{p+2}, v{p+3}")
        k(f"buffer_store_dwordx2 {vr(o+2*mm,2)}, v{vO}, {sr(rO,4)}, s{sO} offen offset:{32*mm}")
    stamp_flush(k, sWS, 5, 3, vT0, vT1)
    k("L_k5_end:\ns_endpgm")
    return k
```

```python
import sys
sys.path.insert(0, "gen")
from build import build
import k1, k2, k25, k3, k4
L = [(k1.gen_k1(), k1.K1_GRID, 256, k1.K1_LDS), (k2.gen_k2(), k2.K2_GRID, 192, k2.K2_LDS), (k25.gen_k25(), k25.K25_GRID, 384, k25.K25_LDS),
     (k3.gen_k3(), k3.K3_GRID, 512, k3.K3_LDS), (k4.gen_k4(), k4.K4_GRID, 256, k4.K4_LDS), (k4.gen_k5(), k4.K5_GRID, 576, 0)]
build(L, sys.argv[1] if len(sys.argv) > 1 else "t.s")
```

```python
import sys
sys.path.insert(0, "gen")
from build import build
from common import *
import k1, k2, k25, k3, k4
e = Kernel("e_kernel"); e("s_endpgm")
L = [(k1.gen_k1(), k1.K1_GRID, 256, k1.K1_LDS), (k2.gen_k2(), k2.K2_GRID, 192, k2.K2_LDS), (k25.gen_k25(), k25.K25_GRID, 384, k25.K25_LDS),
     (k3.gen_k3(), k3.K3_GRID, 512, k3.K3_LDS), (k4.gen_k4(), k4.K4_GRID, 256, k4.K4_LDS), (k4.gen_k5(), k4.K5_GRID, 576, 0)]
build(L + [(e, 256, 256, 0)] * 4, "e4.s")
build([(e, 256, 256, 0)] * 4 + L, "e4b.s")
```
